```python
import torch

def _softmax(x, axis=-1):
    return torch.softmax(x, dim=axis)

def _gelu(x):
    return torch.nn.functional.gelu(x, approximate='tanh')

def _silu(x):
    return torch.nn.functional.silu(x)

def _sigmoid(x):
    return torch.sigmoid(x)

def _layernorm(x, axis=-1, eps=1e-05):
    m = x.mean(dim=axis, keepdim=True)
    v = x.var(dim=axis, keepdim=True, unbiased=False)
    return (x - m) / torch.sqrt(v + eps)

def _scatter_add(tgt, idx, src, axis=0):
    return tgt.clone().index_add_(axis, idx, src)

def _segment_sum(src, seg, n):
    out = torch.zeros((n,) + src.shape[1:], dtype=src.dtype)
    return out.index_add_(0, seg, src)

def _pad(x, pw):
    flat = tuple((v for pair in reversed(pw) for v in pair))
    return torch.nn.functional.pad(x, flat)
kernel_name = 'standalone__dilated_atrous__vision'

def setup_inputs():

    _w = lambda a: (lambda t: t.to(torch.bfloat16) if t.is_floating_point() else t)(torch.as_tensor(a))
    H = W = 224
    C = 96
    k = 5
    return {'x': _w((lambda *s: torch.randn(*s, dtype=torch.bfloat16) * 0.05)(1, H, W, C)), 'w': _w((lambda *s: torch.randn(*s, dtype=torch.bfloat16) * 0.05)(k, k, C, C) * (1.0 / (k * C ** 0.5)))}

def reference(x, w):
    B, H, W, C = x.shape
    k = 5
    rate = 2
    pad = (k - 1) * rate // 2
    xp = _pad(x, ((0, 0), (pad, pad), (pad, pad), (0, 0)))
    out = torch.zeros_like(x)
    for i in range(k):
        for j in range(k):
            tap = xp[:, i * rate:i * rate + H, j * rate:j * rate + W, :].clone()
            out = out + torch.einsum('bhwc,co->bhwo', tap, w[i, j])
    return out
```

```python
import sys

NAME = "standalone__dilated_atrous__vision"

DIAG = False
STFLAG = " sc1"
ORDER = "chain"
BOFF = 10
MARGIN = 9
XLOOK = 26
WAITAGE = 9
REVB = True

WST = 20480
XBASE = 3 * WST
XPLANE = 25600
XROW = 1280
STG = XBASE + 3 * XPLANE
LDS_BYTES = 163840
CSCR = STG + 12288

X_BYTES = 224 * 224 * 192
W_BYTES = 25 * 96 * 192
OOB = 0x40000000
NST = 23

sSRDX, sSRDW, sSRDO, sSRDD = 12, 16, 20, 24
sQ, sO0, sSy, sSx, sThrY, sThrX, sT0, sTa, sTb, sKc, sWave, sOO = range(28, 40)
sJB, sJA0, sJA1 = 58, 59, 55


class Asm:
    def __init__(self):
        self.l = []

    def __call__(self, s):
        self.l.append("    " + s)

    def label(self, s):
        self.l.append(s + ":")

    def text(self):
        return "\n".join(self.l) + "\n"


def vr(b, n=4):
    return "v[%d:%d]" % (b, b + n - 1)


def srd(a, d, lo, nbytes):
    a("s_mov_b32 s%d, s%d" % (d, lo))
    a("s_and_b32 s%d, s%d, 0xffff" % (d + 1, lo + 1))
    a("s_mov_b32 s%d, 0x%x" % (d + 2, nbytes))
    a("s_mov_b32 s%d, 0x20000" % (d + 3))


vXb = [1, 2, 3, 4, 5]
vXC = [6, 7, 8, 9, 10]
vWA = [11, 12]
vWB = 13
vSA = [14, 15]
vSB = 16
vRd = 17
vOut = 18
vCs = 19
vCo = 20
vPref = 21
vSt = 22
ACCA = 24
ACCB = ACCA + 48
ACCC = ACCB + 24
POOL0 = ACCC + 4
NPOOL = (256 - POOL0) // 4
NVGPR = 256


def stamp(a, idx):
    if not DIAG:
        return
    a("s_memrealtime s[60:61]")
    a("s_memtime s[62:63]")
    a("s_waitcnt lgkmcnt(0)")
    for i in range(4):
        a("v_writelane_b32 v%d, s%d, %d" % (vSt, 60 + i, idx * 4 + i))


def fine(a, i):
    if DIAG:
        a("s_memtime s[%d:%d]" % (66 + 2 * i, 67 + 2 * i))


def stamp_flush(a):
    if not DIAG:
        return
    a("s_waitcnt lgkmcnt(0)")
    for i in range(12):
        a("v_writelane_b32 v%d, s%d, %d" % (vSt, 66 + 2 * i, 48 + i))
    for i in range(4):
        a("v_writelane_b32 v%d, s%d, %d" % (vSt, 90 + i, i))
    a("s_load_dwordx2 s[10:11], s[0:1], 32")
    a("s_waitcnt lgkmcnt(0)")
    srd(a, sSRDD, 10, 1 << 20)
    a("s_lshl_b32 s60, s2, 3")
    a("s_add_u32 s60, s60, s%d" % sWave)
    a("s_lshl_b32 s60, s60, 8")
    a("v_lshlrev_b32 v1, 2, v0")
    a("buffer_store_dword v%d, v1, s[%d:%d], s60 offen" % (vSt, sSRDD, sSRDD + 3))


class Frag:
    def __init__(self, key, reads, valid, release):
        self.key = key
        self.reads = reads
        self.valid = valid
        self.release = release
        self.first = None
        self.last = None
        self.reg = None
        self.issued = 0
        self.done = 0


def build_stream(mh):
    M = []
    starts = []
    VX = {0: -1, 1: 4, 2: 9}

    def xf(p, bi, s):
        return Frag(("x", p, bi, s), [("ds_read_b128 %%s, v%d offset:%d" % (vXb[bi], p * XPLANE + s * XROW), 0, 4)], VX[p], None)

    def unit(ntile, accf, wf, p, bi, cen):
        X = [xf(p, bi, s) for s in range(10)]
        L = []
        if ORDER == "chain":
            for r in range(6):
                for t in range(ntile):
                    for a_ in range(5):
                        L.append((accf(r, t), wf[a_][t], X[r + a_]))
        else:
            for s in range(10):
                for a_ in range(5):
                    if 0 <= s - a_ <= 5:
                        for t in range(ntile):
                            L.append((accf(s - a_, t), wf[a_][t], X[s]))
        if cen:
            C = []
            for a_ in cen:
                cf = Frag(("c", p, bi, a_), [("ds_read_b128 %%s, v%d offset:%d" % (vXC[bi], p * XPLANE + a_ * XROW), 0, 4)], 14, None)
                C.append((ACCC, wf[a_][0], cf))
            mid = 15
            L = L[:mid] + C + L[mid:]
        return L

    for k in range(15):
        p, bi = divmod(k, 5)
        starts.append(len(M))
        wf = [[Frag(("wa", k, a_, t),
                    [("ds_read_b64_tr_b16 %%s, v%d offset:%d" % (vWA[t], (k % 3) * WST + a_ * 4096 + h * 512), 2 * h, 2) for h in range(2)],
                    k - 1, k) for t in range(2)] for a_ in range(5)]
        M += unit(2, lambda r, t: ACCA + (r * 2 + t) * 4, wf, p, bi, None)
    for u in range(15):
        k = 15 + u // 2
        p, bi = divmod(u, 5)
        if u % 2 == 0:
            starts.append(len(M))
        wf = [[Frag(("wb", u, a_),
                    [("ds_read_b64_tr_b16 %%s, v%d offset:%d" % (vWB, (k % 3) * WST + (u % 2) * 10240 + a_ * 2048 + h * 256), 2 * h, 2) for h in range(2)],
                    k - 1, k if k < NST - 1 else None)] for a_ in range(5)]
        lo = [0, 1, 2] if u % 2 == 0 else [0, 1]
        cen = lo if mh == 0 else [x for x in range(5) if x not in lo]
        M += unit(1, lambda r, t: ACCB + r * 4, wf, p, bi, cen)
    return M, starts


def schedule(mh):
    M, starts = build_stream(mh)
    N = len(M)
    bpos = {}
    for k in range(NST - 1):
        off = BOFF
        if k == 0:
            off = 24
        if k == 15:
            off = 18
        bpos[k] = starts[k] + off
    bpos[-1] = -1
    gap2bar = {v: k for k, v in bpos.items() if k >= 0}
    frags = []
    for i, (acc, w, x) in enumerate(M):
        for f in (w, x):
            if f.first is None:
                f.first = i
                frags.append(f)
            f.last = i
    for f in frags:
        f.dead = f.first - MARGIN
        if f.release is not None:
            f.dead = min(f.dead, bpos[f.release] - MARGIN)
    pend = sorted(frags, key=lambda f: (f.dead, f.first))
    free = list(range(NPOOL))
    freeat = {}
    for f in frags:
        freeat.setdefault(f.last, []).append(f)
    lastacc = {}
    firstacc = {}
    for i, (acc, w, x) in enumerate(M):
        lastacc[acc] = i
        firstacc.setdefault(acc, i)
    epi = []
    for r in range(6):
        for t in range(2):
            b = ACCA + (r * 2 + t) * 4
            epi.append((lastacc[b] + 8, b, "ds_write_b64 v%d, %s offset:%d" % (vSA[t], vr(b, 2), r * 2048 + (6 * 2048 if False else 0)), 15))
    for r in range(6):
        b = ACCB + r * 4
        epi.append((lastacc[b] + 8, b, "ds_write_b64 v%d, %s offset:%d" % (vSB, vr(b, 2), r * 1024), None))
    epi.sort()
    epiq = []
    for e, b, wr, rel in epi:
        epiq.append((e, "v_cvt_pk_bf16_f32 v%d, v%d, v%d" % (b, b, b + 1), False, rel))
        epiq.append((e, "v_cvt_pk_bf16_f32 v%d, v%d, v%d" % (b + 1, b + 2, b + 3), False, rel))
        epiq.append((e, wr, True, rel))
    if mh == 1:
        epiq.append((lastacc[ACCC] + 8, "ds_write_b128 v%d, %s" % (vCs, vr(ACCC)), True, None))
        epiq.sort(key=lambda z: z[0])

    out = []
    q = []
    minslack = [10 ** 9]
    nwait = [0]

    def wait_for(pred, now):
        last = -1
        for j, e in enumerate(q):
            if pred(e):
                last = j
        if last < 0:
            return
        minslack[0] = min(minslack[0], now - q[last][0]) if now > 12 else minslack[0]
        for j, e in enumerate(q):
            if e[0] <= now - WAITAGE:
                last = max(last, j)
        n = min(len(q) - 1 - last, 15)
        out.append("s_waitcnt lgkmcnt(%d)" % n)
        nwait[0] += 1
        del q[:len(q) - n]

    def try_issue(gap, urgent_only):
        for f in pend:
            if bpos[f.valid] > gap or (bpos[f.valid] == gap and False):
                continue
            if f.key[0] in ("x", "c") and f.first - gap > XLOOK:
                continue
            if urgent_only and f.dead - gap > 3:
                return False
            if f.reg is None:
                if not free:
                    return False
                f.reg = POOL0 + 4 * free.pop(0)
            fmt, ro, n = f.reads[f.issued]
            out.append(fmt % vr(f.reg + ro, n))
            q.append((gap, f, f.release))
            f.issued += 1
            if f.issued == len(f.reads):
                pend.remove(f)
            return True
        return False

    while pend and pend[0].dead < 0:
        assert try_issue(-1, False)
    for i, (acc, w, x) in enumerate(M):
        if i == starts[15]:
            out.append("@B")
        for f in (w, x):
            assert f.issued == len(f.reads), (i, f.key)
        wait_for(lambda e: e[1] is w or e[1] is x, i)
        c = "0" if firstacc[acc] == i else vr(acc)
        out.append("v_mfma_f32_16x16x32_bf16 %s, %s, %s, %s" % (vr(acc), vr(w.reg), vr(x.reg), c))
        for f in freeat.get(i, []):
            free.append((f.reg - POOL0) // 4)
        if i in gap2bar:
            k = gap2bar[i]
            assert not any(f.release == k for f in pend), k
            assert not any(z[3] == k for z in epiq), ("epilogue late", k)
            wait_for(lambda e: e[2] == k, i)
            out.append("s_barrier")
            if DIAG:
                out.append("@T%d" % k)
            continue
        n = 0
        if try_issue(i, False):
            n += 1
            if try_issue(i, True):
                n += 1
        while n < 2 and epiq and epiq[0][0] <= i:
            e = epiq.pop(0)
            out.append(e[1])
            if e[2]:
                q.append((i, None, e[3]))
            n += 1
    assert not pend
    tail = [e[1] for e in epiq]
    sys.stderr.write("mh=%d mfma=%d lines=%d waits=%d minslack=%d tail=%d\n" % (mh, N, len(out), nwait[0], minslack[0], len(tail)))
    return out, tail


def gen():
    a = Asm()
    a.l.append("; @launch grid=(256,1,1) block=(512,1,1) lds=%d" % LDS_BYTES)
    a.l.append('.amdgcn_target "amdgcn-amd-amdhsa--gfx950"')
    a.l.append(".text")
    a.l.append(".globl %s_kernel" % NAME)
    a.l.append(".p2align 8")
    a.l.append(".type %s_kernel,@function" % NAME)
    a.label("%s_kernel" % NAME)
    a("s_cmp_ge_u32 s2, 256")
    a("s_cbranch_scc1 L_end0")
    a("s_load_dwordx4 s[4:7], s[0:1], 0")
    a("s_load_dwordx2 s[8:9], s[0:1], 16")
    a("v_lshrrev_b32 v1, 6, v0")
    a("v_lshlrev_b32 v2, 7, v0")
    a("v_readfirstlane_b32 s%d, v1" % sWave)
    a("v_and_b32 v0, 63, v0")
    a("s_getpc_b64 s[56:57]")
    a("s_cmp_ge_u32 s%d, 4" % sWave)
    a("s_cbranch_scc1 L_nopref")
    a("global_load_dword v%d, v2, s[56:57] offset:1024" % vPref)
    a.label("L_nopref")
    if DIAG:
        a("v_mov_b32 v%d, 0" % vSt)
        a("s_memrealtime s[90:91]")
        a("s_memtime s[92:93]")
        for i in range(12):
            a("s_mov_b32 s%d, 0" % (66 + 2 * i))
    a("s_and_b32 s40, s2, 7")
    a("s_lshr_b32 s41, s2, 3")
    a("s_and_b32 s%d, s41, 3" % sQ)
    a("s_bfe_u32 s42, s41, 0x10002")
    a("s_bfe_u32 s43, s41, 0x10003")
    a("s_lshr_b32 s44, s41, 4")
    a("s_and_b32 s45, s40, 1")
    a("s_lshl_b32 s45, s45, 1")
    a("s_or_b32 s44, s44, s45")
    a("s_lshr_b32 s45, s40, 1")
    a("s_lshr_b32 s46, s%d, 1" % sQ)
    a("s_xor_b32 s47, s%d, s46" % sQ)
    a("s_and_b32 s47, s47, 1")
    a("s_mul_i32 s48, s45, 28")
    a("s_mul_i32 s49, s46, 27")
    a("s_add_u32 s48, s48, s49")
    a("s_mul_i32 s49, s44, 28")
    a("s_mul_i32 s50, s47, 27")
    a("s_add_u32 s49, s49, s50")
    a("s_lshl1_add_u32 s48, s48, s43")
    a("s_lshl1_add_u32 s49, s49, s42")
    a("s_mul_i32 s48, s48, 224")
    a("s_add_u32 s48, s48, s49")
    a("s_mul_i32 s%d, s48, 192" % sOO)
    a("s_mul_i32 s48, s46, 5")
    a("s_add_u32 s48, s48, s47")
    a("s_mul_i32 s%d, s48, %d" % (sT0, 4 * 18432))
    a("s_mul_i32 s48, s46, 3")
    a("s_cmp_eq_u32 s45, s48")
    a("s_cselect_b32 s50, 2, 0")
    a("s_mul_i32 s48, s47, 3")
    a("s_cmp_eq_u32 s44, s48")
    a("s_cselect_b32 s51, 2, 0")
    a("s_lshl_b32 s48, s46, 1")
    a("s_sub_u32 s48, 1, s48")
    a("s_bitcmp1_b32 s%d, 0" % sQ)
    a("s_cselect_b32 s%d, s51, s50" % sThrY)
    a("s_cselect_b32 s%d, s50, s51" % sThrX)
    a("s_mov_b32 s49, 86016")
    a("s_cselect_b32 s%d, -384, s49" % sSy)
    a("s_cselect_b32 s%d, s49, 384" % sSx)
    a("s_mov_b32 s49, 92160")
    a("s_cselect_b32 s%d, -18432, s49" % sTa)
    a("s_cselect_b32 s%d, s49, 18432" % sTb)
    a("s_mul_i32 s%d, s%d, s48" % (sSy, sSy))
    a("s_mul_i32 s%d, s%d, s48" % (sSx, sSx))
    a("s_mul_i32 s%d, s%d, s48" % (sTa, sTa))
    if REVB:
        a("s_mul_i32 s49, s%d, s46" % sTb)
        a("s_lshl_b32 s49, s49, 2")
        a("s_sub_u32 s%d, s%d, s49" % (sT0, sT0))
    else:
        a("s_mul_i32 s%d, s%d, s48" % (sTb, sTb))
    a("s_add_u32 s48, s%d, s%d" % (sSy, sSx))
    a("s_lshl_b32 s48, s48, 1")
    a("s_sub_u32 s%d, s%d, s48" % (sO0, sOO))
    a("s_lshl_b32 s48, s42, 1")
    a("s_sub_u32 s%d, 2, s48" % sKc)
    a("s_cmp_eq_u32 s%d, 3" % sQ)
    a("s_cselect_b32 s48, s%d, s%d" % (sKc, sQ))
    a("s_lshl_b32 s%d, s48, 6" % sJB)
    a("s_cmp_eq_u32 s48, 0")
    a("s_cselect_b32 s%d, 64, 0" % sJA0)
    a("s_cmp_eq_u32 s48, 2")
    a("s_cselect_b32 s%d, 64, 128" % sJA1)
    fine(a, 0)
    a("s_cmp_lt_u32 s%d, 4" % sWave)
    a("s_cbranch_scc1 L_comp")
    a("s_setprio 3")
    a("s_and_b32 s40, s%d, 1" % sWave)
    a("s_cmp_ge_u32 s%d, 6" % sWave)
    a("s_cbranch_scc1 L_xload")

    a("v_lshrrev_b32 v1, 3, v0")
    a("v_mul_u32_u24 v1, 192, v1")
    a("v_and_b32 v2, 1, v0")
    a("v_lshl_add_u32 v1, v2, 4, v1")
    a("v_lshrrev_b32 v3, 3, v0")
    a("v_xor_b32 v3, v3, v0")
    a("v_and_b32 v3, 2, v3")
    a("v_lshl_add_u32 v1, v3, 4, v1")
    a("v_and_b32 v3, 4, v0")
    a("v_cmp_eq_u32 vcc, 0, v3")
    a("v_mov_b32 v4, s%d" % sJA0)
    a("v_mov_b32 v5, s%d" % sJA1)
    a("v_cndmask_b32 v6, v5, v4, vcc")
    a("v_cndmask_b32 v7, v4, v5, vcc")
    a("v_add_u32 v6, v6, v1")
    a("v_add3_u32 v7, v7, v1, 64")
    a("v_add_u32 v7, %d, v7" % (512 - 64))
    a("s_mul_i32 s41, s%d, 6144" % sKc)
    a("s_mul_i32 s42, s40, 3072")
    a("s_add_u32 s41, s41, s42")
    a("s_add_u32 s41, s41, s%d" % sT0)
    a("s_lshl_b32 s42, s40, 11")
    a("s_mov_b32 s49, s42")
    a("s_add_u32 s48, s42, %d" % (3 * WST))
    a("s_mov_b32 s43, 0")
    a("s_mov_b32 s44, 0")
    a("s_mul_i32 s47, s%d, 5" % sTb)
    fine(a, 1)
    a("s_waitcnt lgkmcnt(0)")
    fine(a, 2)
    srd(a, sSRDW, 6, W_BYTES)

    def wadvance(step, tag):
        a("s_add_u32 s42, s42, %d" % step)
        a("s_cmp_eq_u32 s42, s48")
        a("s_cselect_b32 s42, s49, s42")
        a("s_add_u32 s41, s41, s%d" % sTb)
        a("s_add_u32 s44, s44, 1")
        a("s_cmp_lg_u32 s44, 5")
        a("s_cbranch_scc1 L_wsame%s" % tag)
        a("s_mov_b32 s44, 0")
        a("s_sub_u32 s41, s41, s47")
        a("s_cmp_eq_u32 s%d, 2" % sKc)
        a("s_cselect_b32 s46, -2, 1")
        a("s_add_u32 s%d, s%d, s46" % (sKc, sKc))
        a("s_mul_i32 s46, s46, 6144")
        a("s_add_u32 s41, s41, s46")
        a.label("L_wsame%s" % tag)
        a("s_add_u32 s43, s43, 1")

    a.label("L_wloopA")
    a("s_mov_b32 m0, s42")
    a("s_mov_b32 s45, s41")
    for t in range(5):
        a("buffer_load_dwordx4 v6, s[%d:%d], s45 offen lds" % (sSRDW, sSRDW + 3))
        a("buffer_load_dwordx4 v7, s[%d:%d], s45 offen offset:1024 lds" % (sSRDW, sSRDW + 3))
        if t < 4:
            a("s_add_u32 m0, s42, %d" % ((t + 1) * 4096))
            a("s_add_u32 s45, s45, s%d" % sTa)
    wadvance(WST, "A")
    a("s_setprio 0")
    a("s_waitcnt vmcnt(10)")
    a("s_barrier")
    a("s_cmp_lt_u32 s43, 15")
    a("s_cbranch_scc1 L_wloopA")
    a("s_branch L_wB")

    a.label("L_xload")
    a("s_mul_i32 s41, s40, 48")
    a("s_mul_i32 s42, s40, 3072")
    a("s_add_u32 s42, s42, %d" % XBASE)
    a("s_lshl_b32 s43, s%d, 2" % sSy)
    a("s_lshl_b32 s45, s%d, 6" % sKc)
    a("v_lshrrev_b32 v1, 2, v0")
    a("v_add_u32 v1, s41, v1")
    a("v_and_b32 v2, 3, v0")
    a("v_bfrev_b32 v3, 2")

    def xld(p, kk, m_):
        a("s_add_u32 m0, s42, %d" % (p * XPLANE + (5 * m_ + kk) * 1024))
        a("s_nop 0")
        a("buffer_load_dwordx4 v%d, s[%d:%d], s45 offen lds" % (32 + kk * 5 + m_, sSRDX, sSRDX + 3))

    def next_kc():
        a("s_cmp_eq_u32 s%d, 2" % sKc)
        a("s_cselect_b32 s46, -2, 1")
        a("s_add_u32 s%d, s%d, s46" % (sKc, sKc))
        a("s_lshl_b32 s45, s%d, 6" % sKc)

    for kk in range(3):
        o = 32 + kk * 5
        if kk:
            a("v_add_u32 v1, 16, v1")
        a("v_mul_u32_u24 v4, 205, v1")
        a("v_lshrrev_b32 v4, 12, v4")
        a("v_mul_u32_u24 v5, 20, v4")
        a("v_sub_u32 v%d, v1, v5" % (8 + kk))
        a("v_lshrrev_b32 v6, 1, v%d" % (8 + kk))
        a("v_and_b32 v6, 2, v6")
        a("v_xor_b32 v6, v6, v2")
        a("v_lshlrev_b32 v6, 4, v6")
        a("v_cmp_gt_u32 vcc, s%d, v%d" % (sThrX, 8 + kk))
        a("v_mad_i32_i24 v6, v4, s%d, v6" % sSy)
        a("v_mad_i32_i24 v6, v%d, s%d, v6" % (8 + kk, sSx))
        a("v_add_u32 v6, s%d, v6" % sO0)
        a("v_cndmask_b32 v6, v6, v3, vcc")
        a("v_cmp_gt_u32 vcc, s%d, v4" % sThrY)
        a("v_add_u32 v%d, s43, v6" % (o + 1))
        a("v_add_u32 v%d, s43, v%d" % (o + 2, o + 1))
        a("v_cndmask_b32 v%d, v6, v3, vcc" % o)
        a("v_add_u32 v%d, s43, v%d" % (o + 3, o + 2))
        if kk == 0:
            fine(a, 1)
            a("s_waitcnt lgkmcnt(0)")
            fine(a, 2)
            srd(a, sSRDX, 4, X_BYTES)
        if kk == 2:
            a("s_cmp_eq_u32 s40, 1")
            a("s_cbranch_scc1 L_xskip0")
        for m_ in range(4):
            xld(0, kk, m_)
        fine(a, 3 + kk)
    a.label("L_xskip0")
    a("s_setprio 0")
    a("s_barrier")
    stamp(a, 1)
    a("s_waitcnt vmcnt(0)")
    stamp(a, 2)
    a("s_barrier")
    a("s_branch L_xrest")
    a.label("L_end0")
    a("s_endpgm")

    a.label("L_wB")
    a("v_lshrrev_b32 v1, 2, v0")
    a("v_mul_u32_u24 v1, 192, v1")
    a("v_lshl_add_u32 v1, v2, 4, v1")
    a("v_lshrrev_b32 v3, 4, v0")
    a("v_xor_b32 v3, v3, v0")
    a("v_and_b32 v3, 2, v3")
    a("v_lshl_add_u32 v1, v3, 4, v1")
    a("v_add_u32 v6, s%d, v1" % sJB)
    a("s_lshl_b32 s42, s40, 10")
    a("s_mov_b32 s49, s42")
    a("s_add_u32 s48, s42, %d" % (3 * WST))
    a.label("L_wloopB")
    a("s_mov_b32 m0, s42")
    a("s_mov_b32 s45, s41")
    for t in range(5):
        a("buffer_load_dwordx4 v6, s[%d:%d], s45 offen lds" % (sSRDW, sSRDW + 3))
        if t < 4:
            a("s_add_u32 m0, s42, %d" % ((t + 1) * 2048))
            a("s_add_u32 s45, s45, s%d" % sTa)
    wadvance(10240, "B")
    a("s_cmp_eq_u32 s43, 30")
    a("s_cbranch_scc1 L_wlast")
    a("s_bitcmp0_b32 s43, 0")
    a("s_cbranch_scc1 L_wloopB")
    a("s_waitcnt vmcnt(10)")
    a("s_barrier")
    a("s_branch L_wloopB")
    a.label("L_wlast")
    a("s_waitcnt vmcnt(5)")
    a("s_barrier")
    a("s_waitcnt vmcnt(0)")
    stamp(a, 3)
    stamp_flush(a)
    a("s_endpgm")

    a.label("L_xrest")
    for kk in range(3):
        o = 32 + kk * 5
        a("v_cmp_gt_u32 vcc, 12, v%d" % (8 + kk))
        a("v_add_u32 v%d, s43, v%d" % (o + 4, o + 3))
        a("s_nop 0")
        a("v_cndmask_b32 v%d, v%d, v3, vcc" % (o + 4, o + 4))
    srd(a, sSRDO, 8, X_BYTES)

    def xbatch(p, m_, tag):
        for kk in range(2):
            xld(p, kk, m_)
        a("s_cmp_eq_u32 s40, 1")
        a("s_cbranch_scc1 L_xs%s" % tag)
        xld(p, 2, m_)
        a.label("L_xs%s" % tag)

    for p in (1, 2):
        next_kc()
        for m_ in range(4):
            xbatch(p, m_, "%d_%d" % (p, m_))
            a("s_barrier")
        a("s_waitcnt vmcnt(0)")
        a("s_barrier")
    for p in range(3):
        next_kc()
        xbatch(p, 4, "%d_4" % p)
        a("s_barrier")
    a("v_lshrrev_b32 v1, 2, v0")
    a("v_and_b32 v4, 7, v1")
    a("v_xor_b32 v4, v4, v2")
    a("v_lshlrev_b32 v4, 4, v4")
    a("v_lshl_add_u32 v4, v1, 7, v4")
    a("s_mul_i32 s41, s40, %d" % (6 * 2048))
    a("s_add_u32 s41, s41, %d" % STG)
    a("v_add_u32 v4, s41, v4")
    a("v_xor_b32 v5, 64, v4")
    a("s_mul_i32 s41, s40, 6")
    a("s_mul_i32 s41, s41, s%d" % sSy)
    a("s_add_u32 s41, s41, s%d" % sOO)
    a("v_mul_i32_i24 v6, s%d, v1" % sSx)
    a("v_lshl_add_u32 v6, v2, 4, v6")
    a("v_add_u32 v6, s41, v6")
    a("s_barrier")
    a("s_waitcnt vmcnt(0)")
    a("s_barrier")
    a("s_barrier")
    for r in range(6):
        for j in range(2):
            a("ds_read_b128 %s, v%d offset:%d" % (vr(48 + (r * 2 + j) * 4), 4 + j, r * 2048))
    for r in range(6):
        if r == 0:
            a("s_waitcnt lgkmcnt(10)")
        if r == 1:
            a("s_waitcnt lgkmcnt(0)")
        for j in range(2):
            a("buffer_store_dwordx4 %s, v6, s[%d:%d], s%d offen%s" % (vr(48 + (r * 2 + j) * 4), sSRDO, sSRDO + 3, (sJA0, sJA1)[j], STFLAG))
        if r < 5:
            a("v_add_u32 v6, s%d, v6" % sSy)
            a("s_barrier")
    if DIAG:
        a("s_waitcnt vmcnt(0)")
    stamp(a, 3)
    stamp_flush(a)
    a("s_endpgm")

    a.label("L_comp")
    a("s_and_b32 s50, s%d, 1" % sWave)
    a("s_lshr_b32 s51, s%d, 1" % sWave)
    T = 100
    vn, vg, vq, vc, t0, t1, t2 = T, T + 1, T + 2, T + 3, T + 4, T + 5, T + 6
    a("v_and_b32 v%d, 15, v0" % vn)
    a("v_lshrrev_b32 v%d, 4, v0" % vg)
    a("v_lshrrev_b32 v%d, 2, v%d" % (vq, vn))
    a("v_and_b32 v%d, 3, v0" % vc)
    a("v_lshl_add_u32 v%d, v%d, 3, v%d" % (t0, vg, vq))
    a("v_and_b32 v%d, 1, v%d" % (t1, vg))
    a("v_lshrrev_b32 v%d, 1, v%d" % (t2, vq))
    a("v_lshl_add_u32 v%d, v%d, 1, v%d" % (t2, t1, t2))
    a("s_lshl_b32 s52, s51, 1")
    a("v_xor_b32 v%d, s52, v%d" % (t2, t2))
    a("v_lshlrev_b32 v%d, 5, v%d" % (t2, t2))
    a("v_lshl_add_u32 v%d, v%d, 7, v%d" % (t2, t0, t2))
    a("v_lshl_add_u32 v%d, v%d, 3, v%d" % (vWA[0], vc, t2))
    a("v_xor_b32 v%d, 32, v%d" % (vWA[1], vWA[0]))
    a("v_xor_b32 v%d, s51, v%d" % (t1, t1))
    a("v_lshlrev_b32 v%d, 5, v%d" % (t1, t1))
    a("v_lshl_add_u32 v%d, v%d, 6, v%d" % (t1, t0, t1))
    a("v_lshl_add_u32 v%d, v%d, 3, v%d" % (vWB, vc, t1))
    a("s_mul_i32 s53, s50, %d" % (6 * XROW))
    a("s_add_u32 s53, s53, %d" % XBASE)
    a("v_lshlrev_b32 v%d, 4, v%d" % (t2, vg))
    a("v_add_u32 v%d, 12, v%d" % (t0, vq))
    a("v_mul_u32_u24 v%d, %d, v%d" % (T + 7, XROW, t0))
    a("v_add_u32 v%d, %d, v%d" % (T + 7, XBASE, T + 7))
    a("s_lshr_b32 s46, s%d, 1" % sQ)
    for i in range(5):
        if REVB:
            a("s_cmp_eq_u32 s46, 0")
            a("s_cselect_b32 s54, %d, %d" % (i, 4 - i))
        else:
            a("s_mov_b32 s54, %d" % i)
        a("v_add_u32 v%d, s54, v%d" % (t0, vn))
        a("v_lshlrev_b32 v%d, 3, v%d" % (t1, t0))
        a("v_and_b32 v%d, 32, v%d" % (t1, t1))
        a("v_xor_b32 v%d, v%d, v%d" % (t1, t1, t2))
        a("v_lshl_add_u32 v%d, v%d, 6, v%d" % (t1, t0, t1))
        a("v_add_u32 v%d, s53, v%d" % (vXb[i], t1))
        a("s_add_u32 s54, s54, 12")
        a("v_add_u32 v%d, s54, v%d" % (t0, vc))
        a("v_lshlrev_b32 v%d, 3, v%d" % (t1, t0))
        a("v_and_b32 v%d, 32, v%d" % (t1, t1))
        a("v_xor_b32 v%d, v%d, v%d" % (t1, t1, t2))
        a("v_lshl_add_u32 v%d, v%d, 6, v%d" % (t1, t0, t1))
        a("v_add_u32 v%d, v%d, v%d" % (vXC[i], T + 7, t1))
    a("v_lshrrev_b32 v%d, 1, v%d" % (t0, vg))
    a("s_lshl_b32 s52, s51, 2")
    a("v_add_u32 v%d, s52, v%d" % (t0, t0))
    a("v_and_b32 v%d, 7, v%d" % (t1, vn))
    a("v_xor_b32 v%d, v%d, v%d" % (t0, t0, t1))
    a("v_lshlrev_b32 v%d, 4, v%d" % (t0, t0))
    a("v_lshl_add_u32 v%d, v%d, 7, v%d" % (t0, vn, t0))
    a("v_and_b32 v%d, 1, v%d" % (t1, vg))
    a("v_lshl_add_u32 v%d, v%d, 3, v%d" % (t0, t1, t0))
    a("s_mul_i32 s52, s50, %d" % (6 * 2048))
    a("s_add_u32 s52, s52, %d" % STG)
    a("v_add_u32 v%d, s52, v%d" % (vSA[0], t0))
    a("v_xor_b32 v%d, 32, v%d" % (vSA[1], vSA[0]))
    a("v_lshrrev_b32 v%d, 1, v%d" % (t0, vg))
    a("s_lshl_b32 s52, s51, 1")
    a("v_add_u32 v%d, s52, v%d" % (t0, t0))
    a("v_bfe_u32 v%d, v%d, 1, 2" % (t2, vn))
    a("v_xor_b32 v%d, v%d, v%d" % (t0, t0, t2))
    a("v_lshlrev_b32 v%d, 4, v%d" % (t0, t0))
    a("v_lshl_add_u32 v%d, v%d, 6, v%d" % (t0, vn, t0))
    a("v_lshl_add_u32 v%d, v%d, 3, v%d" % (t0, t1, t0))
    a("s_mul_i32 s52, s50, %d" % (6 * 1024))
    a("s_add_u32 s52, s52, %d" % STG)
    a("v_add_u32 v%d, s52, v%d" % (vSB, t0))
    a("v_lshrrev_b32 v%d, 2, v0" % t0)
    a("v_bfe_u32 v%d, v0, 3, 2" % t1)
    a("v_xor_b32 v%d, v%d, v%d" % (t1, t1, vc))
    a("v_lshlrev_b32 v%d, 4, v%d" % (t1, t1))
    a("v_lshl_add_u32 v%d, v%d, 6, v%d" % (t1, t0, t1))
    a("s_mul_i32 s52, s%d, %d" % (sWave, 3 * 1024))
    a("s_add_u32 s52, s52, %d" % STG)
    a("v_add_u32 v%d, s52, v%d" % (vRd, t1))
    a("s_mul_i32 s53, s%d, 3" % sWave)
    a("s_mul_i32 s53, s53, s%d" % sSy)
    a("s_add_u32 s53, s53, s%d" % sOO)
    a("v_mul_i32_i24 v%d, s%d, v%d" % (t0, sSx, t0))
    a("v_lshl_add_u32 v%d, v%d, 4, v%d" % (t0, vc, t0))
    a("v_add_u32 v%d, s53, v%d" % (vOut, t0))
    a("s_lshl_b32 s52, s51, 10")
    a("s_add_u32 s52, s52, %d" % CSCR)
    a("v_lshlrev_b32 v%d, 4, v0" % t0)
    a("v_add_u32 v%d, s52, v%d" % (vCs, t0))
    a("v_add_u32 v%d, 12, v%d" % (t0, vq))
    a("v_add_u32 v%d, 12, v%d" % (t1, vc))
    a("v_mul_i32_i24 v%d, s%d, v%d" % (t0, sSy, t0))
    a("v_mul_i32_i24 v%d, s%d, v%d" % (t1, sSx, t1))
    a("v_lshl_add_u32 v%d, v%d, 3, v%d" % (t0, vg, t0))
    a("s_lshl_b32 s52, s51, 5")
    a("s_add_u32 s52, s52, s%d" % sOO)
    a("v_add3_u32 v%d, v%d, v%d, s52" % (vCo, t0, t1))
    fine(a, 1)
    a("s_waitcnt lgkmcnt(0)")
    srd(a, sSRDO, 8, X_BYTES)
    a("s_setprio 2")
    a("s_barrier")
    a("s_cmp_eq_u32 s50, 1")
    a("s_barrier")
    stamp(a, 1)
    if DIAG:
        a("s_cmp_eq_u32 s50, 1")

    S = [schedule(0), schedule(1)]
    n = 0
    while S[0][0][n] == S[1][0][n]:
        n += 1
    sys.stderr.write("common prefix %d lines\n" % n)

    def emit(lines):
        for t in lines:
            if t == "@B":
                fine(a, 2)
            elif t.startswith("@T"):
                k = int(t[2:])
                if k in (0, 1, 4, 9, 14, 18, 21):
                    fine(a, 3 + (0, 1, 4, 9, 14, 18, 21).index(k))
            else:
                a(t)

    emit(S[0][0][:n])
    a("s_cbranch_scc1 L_c1")
    for mh in range(2):
        if mh == 1:
            a.label("L_c1")
        emit(S[mh][0][n:])
        stamp(a, 2)
        a("s_nop 7")
        for t in S[mh][1]:
            a(t)
        a("s_waitcnt lgkmcnt(0)")
        a("s_barrier")
        fine(a, 10)
        R = POOL0
        for i in range(3):
            a("ds_read_b128 %s, v%d offset:%d" % (vr(R + i * 4), vRd, i * 1024))
        if mh == 0:
            a("ds_read_b128 %s, v%d" % (vr(R + 12), vCs))
        for i in range(3):
            a("s_waitcnt lgkmcnt(%d)" % (0 if DIAG else 2 - i + (1 - mh)))
            a("buffer_store_dwordx4 %s, v%d, s[%d:%d], s%d offen%s" % (vr(R + i * 4), vOut, sSRDO, sSRDO + 3, sJB, STFLAG))
            if i < 2:
                a("v_add_u32 v%d, s%d, v%d" % (vOut, sSy, vOut))
        fine(a, 11)
        if mh == 0:
            a("s_cmp_eq_u32 s%d, 3" % sQ)
            a("s_cbranch_scc1 L_fin0")
            a("s_waitcnt lgkmcnt(0)")
            for i in range(4):
                a("v_add_f32 v%d, v%d, v%d" % (ACCC + i, ACCC + i, R + 12 + i))
            a("v_cvt_pk_bf16_f32 v%d, v%d, v%d" % (ACCC, ACCC, ACCC + 1))
            a("v_cvt_pk_bf16_f32 v%d, v%d, v%d" % (ACCC + 1, ACCC + 2, ACCC + 3))
            a("buffer_store_dwordx2 %s, v%d, s[%d:%d], s%d offen%s" % (vr(ACCC, 2), vCo, sSRDO, sSRDO + 3, sJB, STFLAG))
        a.label("L_fin%d" % mh)
        if DIAG:
            a("s_waitcnt vmcnt(0)")
        stamp(a, 3)
        stamp_flush(a)
        a("s_endpgm")
    a.l.append(".fill (34048 - (. - %s_kernel)) / 4, 4, 0xbf800000" % NAME)
    a("s_endpgm")

    a.l.append('.section .rodata,"a"')
    a.l.append(".p2align 6")
    a.l.append(".amdhsa_kernel %s_kernel" % NAME)
    a.l.append("  .amdhsa_next_free_vgpr %d" % NVGPR)
    a.l.append("  .amdhsa_next_free_sgpr 96")
    a.l.append("  .amdhsa_accum_offset %d" % NVGPR)
    a.l.append("  .amdhsa_group_segment_fixed_size 0")
    a.l.append("  .amdhsa_kernarg_size 40")
    a.l.append("  .amdhsa_user_sgpr_count 2")
    a.l.append("  .amdhsa_user_sgpr_kernarg_segment_ptr 1")
    a.l.append("  .amdhsa_system_sgpr_workgroup_id_x 1")
    a.l.append("  .amdhsa_float_denorm_mode_32 3")
    a.l.append(".end_amdhsa_kernel")
    return a.text()


if __name__ == "__main__":
    if "-diag" in sys.argv:
        DIAG = True
        sys.argv.remove("-diag")
    for kv in [x for x in sys.argv[1:] if "=" in x]:
        k, v = kv.split("=", 1)
        globals()[k] = eval(v)
        sys.argv.remove(kv)
    out = sys.argv[1] if len(sys.argv) > 1 else "cdna_kernels/%s.s" % NAME
    open(out, "w").write(gen())
    print("wrote", out)
```

```python
import sys
sys.path.insert(0, "gen")
import gen2 as G
from gen2 import Asm, vr, srd, Frag

NAME = G.NAME
NSTG = 18
NOWAIT = False
TIM = False
NODMA = False
WPRIO = 0
SLP = 0
WIN = 0
WT = 128
URG = 3
NW = 3
ORD = "chain"
XPRIO = 0
CPRIO = 2
ONEW = True
NV = 64
MODE = "i"
XF = True
WST = 30720
XBASE = 3 * WST
MARGIN, XLOOK, WAITAGE, BOFF = 9, 26, 9, 8
POOL0 = 100


def stream():
    M = []; starts = []
    nst = NSTG
    for k in range(nst):
        starts.append(len(M))
        rows = 3
        wf = [[Frag(("wa", k, a_, t), [("ds_read_b64_tr_b16 %%s, v%d offset:%d" % (11 + t, (k % 2) * WST + a_ * 6144 + h * 768), 2 * h, 2) for h in range(2)], k - 1, k if k < nst - 1 else None) for t in range(3)] for a_ in range(5)]
        X = [Frag(("x", k, s), [("ds_read_b128 %%s, v%d offset:%d" % (1 + k % 5, (k % 2) * 12800 + s * 1280), 0, 4)], -1, None) for s in range(rows + 4)]
        base = 24 + (36 if k % 2 else 0)
        L = []
        for t in range(3):
            if ORD == "chain":
                for r in range(rows):
                    for a_ in range(5):
                        L.append((base + (r * 3 + t) * 4, wf[a_][t], X[r + a_]))
            else:
                for a_ in range(5):
                    for r in range(rows):
                        L.append((base + (r * 3 + t) * 4, wf[a_][t], X[r + a_]))
        C = []
        for a_ in range(2 + k % 2):
            cf = Frag(("c", k, a_), [("ds_read_b128 %%s, v%d offset:%d" % (6, a_ * 1280), 0, 4)], -1, None)
            C.append((96, wf[a_][0], cf))
        if ORD == "chain":
            M += L[:10] + C + L[10:]
        else:
            for i, c in enumerate(C): L.insert(4 * i + 3, c)
            M += L
    return M, starts, nst


def schedule():
    M, starts, nst = stream()
    bpos = {k: starts[k] + (BOFF) for k in range(nst - 1)}
    bpos[-1] = -1
    gap2bar = {v: k for k, v in bpos.items() if k >= 0}
    frags = []
    for i, (acc, w, x) in enumerate(M):
        for f in (w, x):
            if f.first is None:
                f.first = i; frags.append(f)
            f.last = i
    for f in frags:
        f.dead = f.first - MARGIN
        if f.release is not None:
            f.dead = min(f.dead, bpos[f.release] - MARGIN)
    pend = sorted(frags, key=lambda f: (f.dead, f.first))
    free = list(range(39)); freeat = {}
    for f in frags: freeat.setdefault(f.last, []).append(f)
    out = []; q = []; seen = set()
    def wait_for(pred, now):
        last = -1
        for j, e in enumerate(q):
            if pred(e): last = j
        if last < 0: return
        for j, e in enumerate(q):
            if e[0] <= now - WAITAGE: last = max(last, j)
        n = min(len(q) - 1 - last, 15)
        out.append("s_waitcnt lgkmcnt(%d)" % n)
        del q[:len(q) - n]
    def try_issue(gap, urgent):
        for f in pend:
            if bpos[f.valid] > gap: continue
            if f.key[0] in ("x", "c") and f.first - gap > XLOOK: continue
            if urgent and f.dead - gap > URG: return False
            if f.reg is None:
                if not free: return False
                f.reg = POOL0 + 4 * free.pop(0)
            fmt, ro, n = f.reads[f.issued]
            out.append(fmt % vr(f.reg + ro, n)); q.append((gap, f, f.release)); f.issued += 1
            if f.issued == len(f.reads): pend.remove(f)
            return True
        return False
    while pend and pend[0].dead < 0: assert try_issue(-1, False)
    for i, (acc, w, x) in enumerate(M):
        for f in (w, x): assert f.issued == len(f.reads), (i, f.key)
        wait_for(lambda e: e[1] is w or e[1] is x, i)
        c = vr(acc) if acc in seen else "0"; seen.add(acc)
        out.append("v_mfma_f32_16x16x32_bf16 %s, %s, %s, %s" % (vr(acc), vr(w.reg), vr(x.reg), c))
        for f in freeat.get(i, []): free.append((f.reg - POOL0) // 4)
        if i in gap2bar:
            k = gap2bar[i]
            assert not any(f.release == k for f in pend), k
            wait_for(lambda e: e[2] == k, i)
            out.append("s_barrier")
            continue
        if any(0 < i - b <= WIN for b in gap2bar): continue
        if try_issue(i, False): try_issue(i, True)
    sys.stderr.write("mfma %d lines %d\n" % (len(M), len(out)))
    return out, nst


def gen():
    G.DIAG = True
    a = Asm()
    a.l.append("; @launch grid=(256,1,1) block=(512,1,1) lds=163840")
    a.l.append('.amdgcn_target "amdgcn-amd-amdhsa--gfx950"\n.text\n.globl %s_kernel\n.p2align 8\n.type %s_kernel,@function' % (NAME, NAME))
    a.label("%s_kernel" % NAME)
    a("s_cmp_ge_u32 s2, 256"); a("s_cbranch_scc1 L_end0")
    a("s_load_dwordx4 s[4:7], s[0:1], 0")
    a("v_lshrrev_b32 v1, 6, v0"); a("v_lshlrev_b32 v2, 7, v0")
    a("v_readfirstlane_b32 s38, v1"); a("v_and_b32 v0, 63, v0")
    a("s_getpc_b64 s[56:57]"); a("s_cmp_ge_u32 s38, 3"); a("s_cbranch_scc1 L_nopref")
    a("global_load_dword v21, v2, s[56:57] offset:1024")
    a.label("L_nopref")
    a("v_mov_b32 v22, 0"); a("s_memrealtime s[90:91]"); a("s_memtime s[92:93]")
    for i in range(12): a("s_mov_b32 s%d, 0" % (66 + 2 * i))
    a("s_waitcnt lgkmcnt(0)")
    srd(a, 12, 4, G.X_BYTES); srd(a, 16, 6, G.W_BYTES)
    lines, nst = schedule()
    a("s_and_b32 s40, s38, 1")
    a("s_cmp_lt_u32 s38, 4"); a("s_cbranch_scc1 L_comp")
    a("s_cmp_lt_u32 s38, %d" % (7 if ONEW else 6)); a("s_cbranch_scc1 L_x")
    if ONEW: a("s_mov_b32 s40, 0")
    a("v_lshlrev_b32 v1, 4, v0"); a("v_and_b32 v2, 32, v0"); a("v_xor_b32 v2, v2, v1"); a("v_xor_b32 v3, 32, v1")
    a("s_mul_i32 s40, s40, 3072"); a("s_mov_b32 s41, s40"); a("s_mov_b32 s42, s40"); a("s_add_u32 s48, s40, %d" % (3 * WST)); a("s_mov_b32 s43, 0")
    a("s_setprio %d" % WPRIO)
    a.label("L_wloop")
    a("s_mov_b32 s45, s41")
    if NODMA:
        a("s_cmp_ge_u32 s43, 3"); a("s_cbranch_scc1 L_skipdma")
    for t in range(5):
        a("s_add_u32 m0, s42, %d" % (t * 6144)); a("s_nop 0")
        for p in range(3): a("buffer_load_dwordx4 v%d, s[16:19], s45 offen offset:%d lds" % (1 + p, p * 1024))
        if ONEW:
            a("s_add_u32 m0, s42, %d" % (t * 6144 + 3072)); a("s_add_u32 s46, s45, 3072")
            for p in range(3): a("buffer_load_dwordx4 v%d, s[16:19], s46 offen offset:%d lds" % (1 + p, p * 1024))
        a("s_add_u32 s45, s45, 92160")
    a.label("L_skipdma")
    a("s_add_u32 s42, s42, %d" % WST); a("s_cmp_eq_u32 s42, s48"); a("s_cselect_b32 s42, s40, s42")
    a("s_add_u32 s41, s41, 6144"); a("s_cmp_ge_u32 s41, 92160"); a("s_cselect_b32 s41, s40, s41")
    a("s_add_u32 s43, s43, 1")
    a("s_waitcnt vmcnt(%d)" % (30 if ONEW else 15)); a("s_barrier")
    a("s_cmp_lt_u32 s43, %d" % nst); a("s_cbranch_scc1 L_wloop")
    a("s_waitcnt vmcnt(0)")
    G.stamp(a, 3); G.stamp_flush(a)
    a.label("L_end0")
    a("s_endpgm")
    a.label("L_x")
    a("v_lshrrev_b32 v1, 2, v0"); a("v_mul_u32_u24 v1, 384, v1"); a("v_and_b32 v2, 3, v0"); a("v_lshl_add_u32 v1, v2, 4, v1")
    a("s_mul_i32 s41, s2, 36864"); a("s_mul_i32 s42, s40, 13312"); a("s_add_u32 s42, s42, %d" % XBASE)
    for i in range(13):
        a("s_add_u32 m0, s42, %d" % (i * 1024)); a("s_add_u32 s41, s41, 64 + 6144 * %d" % (i % 2))
        a("buffer_load_dwordx4 v1, s[12:15], s41 offen lds")
    a("s_barrier"); a("s_waitcnt vmcnt(0)"); a("s_barrier")
    a("v_lshlrev_b32 v3, 4, v0"); a("s_lshl_b32 s42, s40, 12"); a("s_add_u32 s42, s42, %d" % (XBASE + 32768)); a("v_add_u32 v3, s42, v3"); a("v_lshlrev_b32 v4, 3, v0"); a("v_add_u32 v4, s42, v4"); a("v_lshlrev_b32 v5, 2, v0"); a("v_add_u32 v5, s42, v5")
    a("s_mov_b32 s43, 0"); a("s_mul_i32 s41, s2, 36864")
    for i in range(4):
        a("buffer_load_dwordx4 %s, v1, s[12:15], s41 offen offset:%d" % (vr(32 + 4 * i), 64 * i))
    a("s_mov_b32 s50, 0xc023d70a"); a("s_mov_b32 s51, 0x3f200000"); a("s_mov_b32 s52, 0xbf200000")
    a("s_waitcnt vmcnt(0)")
    a("s_setprio %d" % XPRIO)
    a.label("L_xloop")
    if XF:
        if SLP: a("s_sleep %d" % SLP)
        if TIM: a("s_memtime s[66:67]")
        for i in range(NV // 5):
            d = i % 12
            a("v_fma_f32 v60, v%d, s50, v%d" % (32 + d, 33 + d)); a("v_fma_f32 v61, v%d, s50, v%d" % (34 + d, 35 + d))
            a("v_fma_f32 v62, v61, s51, v60"); a("v_fma_f32 v63, v61, s52, v60")
            a("v_cvt_pk_bf16_f32 v%d, v62, v63" % (48 + d))
        for i in range(NW):
            if WT == 128:
                a("ds_write_b128 v3, %s offset:%d" % (vr(48 + 4 * (i % 3)), (i % 4) * 1024))
            elif WT == 64:
                for h in range(2): a("ds_write_b64 v4, %s offset:%d" % (vr(48 + 4 * i + 2 * h, 2), i * 1024 + h * 512))
            else:
                for h in range(4): a("ds_write_b32 v5, v%d offset:%d" % (48 + 4 * i + h, i * 1024 + h * 256))
        if TIM: a("s_memtime s[68:69]")
        if not NOWAIT: a("s_waitcnt lgkmcnt(0)")
        if TIM: a("s_memtime s[70:71]")
    a("s_barrier")
    a("s_add_u32 s43, s43, 1"); a("s_cmp_lt_u32 s43, %d" % (nst - 2)); a("s_cbranch_scc1 L_xloop")
    G.stamp(a, 3); G.stamp_flush(a)
    a("s_endpgm")
    a.label("L_comp")
    a("s_lshr_b32 s51, s38, 1")
    a("v_and_b32 v100, 15, v0"); a("v_lshrrev_b32 v101, 4, v0"); a("v_lshrrev_b32 v102, 2, v100"); a("v_and_b32 v103, 3, v0")
    a("v_lshl_add_u32 v104, v101, 3, v102"); a("v_mul_u32_u24 v104, 192, v104"); a("v_lshl_add_u32 v104, v103, 3, v104")
    a("v_and_b32 v105, 1, v101"); a("v_lshlrev_b32 v105, 5, v105"); a("s_mul_i32 s51, s51, 96")
    for t in range(3):
        a("s_add_u32 s52, s51, %d" % (32 * t)); a("v_xor_b32 v106, s52, v105"); a("v_add_u32 v%d, v104, v106" % (11 + t))
    a("s_mul_i32 s53, s40, 3840"); a("s_add_u32 s53, s53, %d" % XBASE); a("v_lshlrev_b32 v106, 4, v101")
    for i in range(6):
        a("v_add_u32 v104, %d, v100" % (i % 5)); a("v_lshlrev_b32 v105, 3, v104"); a("v_and_b32 v105, 32, v105"); a("v_xor_b32 v105, v105, v106")
        a("v_lshl_add_u32 v105, v104, 6, v105"); a("v_add_u32 v%d, s53, v105" % (1 + i))
    a("s_setprio %d" % CPRIO)
    a("s_barrier"); a("s_barrier")
    G.stamp(a, 1)
    for t in lines: a(t)
    G.stamp(a, 2); G.stamp(a, 3); G.stamp_flush(a)
    a("s_endpgm")
    a.l.append(".fill (26048 - (. - %s_kernel)) / 4, 4, 0xbf800000" % NAME)
    a("s_endpgm")
    a.l.append('.section .rodata,"a"\n.p2align 6\n.amdhsa_kernel %s_kernel\n  .amdhsa_next_free_vgpr 256\n  .amdhsa_next_free_sgpr 96\n  .amdhsa_accum_offset 256\n  .amdhsa_group_segment_fixed_size 0\n  .amdhsa_kernarg_size 40\n  .amdhsa_user_sgpr_count 2\n  .amdhsa_user_sgpr_kernarg_segment_ptr 1\n  .amdhsa_system_sgpr_workgroup_id_x 1\n.end_amdhsa_kernel' % NAME)
    return a.text()

XPRIO, CPRIO, NV, NW = 3, 2, 0, 3
URG = 40
XLOOK = 45
BOFF = 4
MARGIN = 7
for WIN in (16, 20, 24):
    open("xy_%d.s" % (WIN), "w").write(gen())
NW = 0
open("xy_%d_nw.s" % (WIN), "w").write(gen())
```

```python
import sys, struct

NAME = "standalone__dilated_atrous__vision"

DIAG = False
STFLAG = " sc1"
XFLAG = " nt"
BOFF = 14
WIN = 10
WINR = 6
URG = 8
BOFF0 = 20
PK = False
VPRIO = 0
MARGIN = 7
XLOOK = 30
WAITAGE = 9
ATOM_AT = -1
POLL_I = 3
MAXPOLL = 2000
HPRIO = 0
FORCE_FALLBACK = False
PROBE = -99
PDIAG = False
ODIAG = 0
NCW = 1
MARKS = None
NPRE = 3
FLAGB = False
BI = False
XORD = "B"
WPRIO1 = 1
WPRIO0 = 3
HPRIO0 = 3
CODE_END = 2048 + 3 * 8192 * 2 + 256

P1, P2 = 1.5, 0.625
LAM = (P1 * P2) ** 2
KAP = P1 * P1 + P2 * P2
N1 = 2 * P1 * P1 * (P1 * P1 - P2 * P2)
N2 = 2 * P2 * P2 * (P2 * P2 - P1 * P1)
AL, BE = (1 + P1 / P2) / 2, (1 - P1 / P2) / 2
BT = [[LAM, 0, -KAP, 0, 1, 0], [0, LAM, 0, -KAP, 0, 1],
      [0, -P1 * P2 * P2, -P2 * P2, P1, 1, 0], [0, P1 * P2 * P2, -P2 * P2, -P1, 1, 0],
      [0, -P2 * P1 * P1, -P1 * P1, P2, 1, 0], [0, P2 * P1 * P1, -P1 * P1, -P2, 1, 0]]


def bf16(x):
    u = struct.unpack("<I", struct.pack("<f", x))[0]
    assert u & 0xffff == 0, x
    return u >> 16


def fl(x):
    return "0x%08x" % struct.unpack("<I", struct.pack("<f", x))[0]


WST = 30720
DBASE = 3 * WST
DPL = 10240
NDB = 4
RAW0 = 2 * WST
RAW1 = DBASE + NDB * DPL
RAWE = RAW1 + 20480
PSCR = RAWE + 6144
LDS_TOTAL = PSCR + 4096
STG = DBASE + 2 * DPL
CSCR = STG + 36864

X_BYTES = 224 * 224 * 192
W_BYTES = 25 * 96 * 192
WT_BYTES = 40 * 18432
NG = 18

sSRDX, sSRDW, sSRDO, sSRDT, sSRDG, sSRDD = 12, 16, 20, 24, 28, 96 - 4 * 0
sSRDD = 52
sQ, sOO, sSy, sSx, sWave, sOdd, sVf, sUf = range(32, 40)
sK = [40, 41, 42]
sSeg = [43, 44, 45]


class Asm:
    def __init__(self):
        self.l = []

    def __call__(self, s):
        self.l.append("    " + s)

    def label(self, s):
        self.l.append(s + ":")

    def text(self):
        return "\n".join(self.l) + "\n"


def vr(b, n=4):
    return "v[%d:%d]" % (b, b + n - 1)


def srd(a, d, lo, nbytes):
    a("s_mov_b32 s%d, s%d" % (d, lo))
    a("s_and_b32 s%d, s%d, 0xffff" % (d + 1, lo + 1))
    a("s_mov_b32 s%d, 0x%x" % (d + 2, nbytes))
    a("s_mov_b32 s%d, 0x20000" % (d + 3))


def S4(d):
    return "s[%d:%d]" % (d, d + 3)


vSt = 27


def stamp(a, idx):
    if not DIAG:
        return
    a("s_memrealtime s[60:61]")
    a("s_memtime s[62:63]")
    a("s_waitcnt lgkmcnt(0)")
    for i in range(4):
        a("v_writelane_b32 v%d, s%d, %d" % (vSt, 60 + i, idx * 4 + i))


def fine(a, i):
    if DIAG:
        a("s_memtime s[%d:%d]" % (66 + 2 * i, 67 + 2 * i))


def stamp_flush(a):
    if not DIAG:
        return
    a("s_waitcnt lgkmcnt(0)")
    for i in range(12):
        a("v_writelane_b32 v%d, s%d, %d" % (vSt, 66 + 2 * i, 48 + i))
    for i in range(4):
        a("v_writelane_b32 v%d, s%d, %d" % (vSt, 90 + i, i))
    if ODIAG:
        lab = "L_od%d" % len(a.l)
        a("s_cmp_lg_u32 s%d, %d" % (sWave, ODIAG))
        a("s_cbranch_scc1 %s" % lab)
        srd(a, sSRDD, 10, 256)
        a("v_mov_b32 v1, 0")
        a("v_readlane_b32 s60, v%d, 0" % vSt)
        a("s_not_b32 s61, s60")
        a("v_writelane_b32 v1, s61, 1")
        a("v_writelane_b32 v1, s60, 2")
        for i in (1, 2, 3):
            a("v_readlane_b32 s60, v%d, %d" % (vSt, 4 * i))
            a("s_nop 3")
            a("v_writelane_b32 v1, s60, %d" % (2 + i))
        a("v_readlane_b32 s62, v%d, 2" % vSt)
        for j, ln in enumerate((6, 51, 52, 53, 54, 55, 56, 57, 10, 14)):
            a("v_readlane_b32 s60, v%d, %d" % (vSt, ln))
            a("s_nop 3")
            a("s_sub_u32 s60, s60, s62")
            a("v_writelane_b32 v1, s60, %d" % (6 + j))
        a("v_lshlrev_b32 v2, 2, v0")
        a("v_cmp_gt_u32 vcc, 6, v0")
        a("s_mov_b64 exec, vcc")
        a("buffer_atomic_umax v1, v2, %s, 0 offen sc1" % S4(sSRDD))
        a("s_mov_b64 exec, 0xffc0")
        a("buffer_atomic_add v1, v2, %s, 0 offen sc1" % S4(sSRDD))
        a("s_mov_b64 exec, -1")
        a.label(lab)
    a("s_load_dwordx2 s[10:11], s[0:1], 32")
    a("s_waitcnt lgkmcnt(0)")
    srd(a, sSRDD, 10, 4 << 20)
    a("s_lshl_b32 s60, s2, 3")
    a("s_add_u32 s60, s60, s%d" % sWave)
    a("s_lshl_b32 s60, s60, 8")
    a("s_add_u32 s60, s60, 0x100000")
    a("v_lshlrev_b32 v1, 2, v0")
    a("buffer_store_dword v%d, v1, %s, s60 offen" % (vSt, S4(sSRDD)))


NITEM = 180


def producer_loads(a, R, sItem):
    a("s_mul_i32 s46, s%d, 3641" % sItem)
    a("s_lshr_b32 s46, s46, 16")
    a("s_mul_i32 s47, s46, 18")
    a("s_sub_u32 s47, s%d, s47" % sItem)
    a("s_cmp_ge_u32 s46, 5")
    a("s_cselect_b32 s48, 5, 0")
    a("s_cselect_b32 s50, 1, 5")
    a("s_cselect_b32 s51, 5, 1")
    a("s_sub_u32 s49, s46, s48")
    a("s_mul_i32 s50, s50, s49")
    a("s_mul_i32 s50, s50, 18432")
    a("s_mul_i32 s51, s51, 18432")
    a("s_mul_i32 s56, s47, 43")
    a("s_lshr_b32 s56, s56, 8")
    a("s_mul_i32 s57, s56, 6144 - 192")
    a("s_lshl_b32 s58, s47, 5")
    a("s_add_u32 s50, s50, s57")
    a("s_add_u32 s50, s50, s58")
    a("v_lshrrev_b32 v%d, 1, v0" % (R + 68))
    a("v_mul_u32_u24 v%d, 192, v%d" % (R + 68, R + 68))
    a("v_and_b32 v%d, 1, v0" % (R + 69))
    a("v_lshl_add_u32 v%d, v%d, 4, v%d" % (R + 68, R + 69, R + 68))


def producer_loads2(a, R):
    for b in range(5):
        a("buffer_load_dwordx4 %s, v%d, %s, s50 offen" % (vr(R + 8 * b + 4), R + 68, S4(sSRDW)))
        if b < 4:
            a("s_add_u32 s50, s50, s51")


def producer_rest(a, R, scr):
    RAWR = lambda b: R + 8 * b + 4
    U = R + 40
    EO = [[R + 48, R + 56], None]
    E1 = [R + 0, R + 1, R + 2, R + 3, R + 8, R + 9, R + 10, R + 11]
    O1 = [R + 16, R + 17, R + 18, R + 19, R + 24, R + 25, R + 26, R + 27]
    E = [[R + 48 + i for i in range(8)], E1]
    O = [[R + 56 + i for i in range(8)], O1]
    vl, vt, vw = R + 69, R + 70, R + 71
    a("s_lshl_b32 s48, s48, 2")
    a("s_add_u32 s48, s48, s49")
    a("s_mul_i32 s48, s48, 18432")
    a("s_lshl_b32 s58, s47, 10")
    a("s_add_u32 s48, s48, s58")
    cf = [[2 * LAM / N1 * P1 ** i for i in range(5)], [1 / N2 * P2 ** i for i in range(5)]]
    a("s_mov_b32 s47, 0xffff0000")
    a("v_lshlrev_b32 v%d, 4, v0" % vl)
    a("v_add_u32 v%d, %s, v%d" % (vw, scr, vl))
    a("v_lshrrev_b32 v%d, 4, v0" % U)
    a("v_and_b32 v%d, 15, v0" % vt)
    a("v_lshlrev_b32 v%d, 3, v%d" % (vt, vt))
    a("v_lshl_add_u32 v%d, v%d, 8, v%d" % (vt, U, vt))
    a("v_add_u32 v%d, %s, v%d" % (vt, scr, vt))
    for b in range(5):
        a("s_mov_b32 s50, %s" % fl(cf[0][b]))
        a("s_mov_b32 s51, %s" % fl(cf[1][b]))
        a("s_waitcnt vmcnt(%d)" % (4 - b))
        if PDIAG and R == 120 and b in (0, 4): fine(a, 5 + b // 4)
        for j in range(4):
            a("v_lshlrev_b32 v%d, 16, v%d" % (U + 2 * j, RAWR(b) + j))
            a("v_and_b32 v%d, s47, v%d" % (U + 2 * j + 1, RAWR(b) + j))
        for pi in range(2):
            d = (O if b & 1 else E)[pi]
            for i in range(8):
                a("%s v%d, s%d, v%d" % ("v_mul_f32" if b < 2 else "v_fmac_f32", d[i], 50 + pi, U + i))
    a("s_mov_b32 s50, %s" % fl(AL / BE))
    for pi in range(2):
        for i in range(8):
            a("v_add_f32 v%d, v%d, v%d" % (U + i, E[pi][i], O[pi][i]))
        for i in range(8):
            a("v_sub_f32 v%d, v%d, v%d" % (O[pi][i], E[pi][i], O[pi][i]))
        for j in range(4):
            a("v_cvt_pk_bf16_f32 v%d, v%d, v%d" % (RAWR(2 * pi) + j, U + 2 * j, U + 2 * j + 1))
        a("ds_write_b128 v%d, %s offset:%d" % (vw, vr(RAWR(2 * pi)), 2 * pi * 1024))
        if pi:
            for i in range(8):
                a("v_mul_f32 v%d, s50, v%d" % (O[pi][i], O[pi][i]))
        for j in range(4):
            a("v_cvt_pk_bf16_f32 v%d, v%d, v%d" % (RAWR(2 * pi + 1) + j, O[pi][2 * j], O[pi][2 * j + 1]))
        a("ds_write_b128 v%d, %s offset:%d" % (vw, vr(RAWR(2 * pi + 1)), (2 * pi + 1) * 1024))
        for k in (2 * pi, 2 * pi + 1):
            for h in range(2):
                a("ds_read_b64_tr_b16 %s, v%d offset:%d" % (vr(R + 48 + 4 * k + 2 * h, 2), vt, k * 1024 + h * 128))
    if PDIAG and R == 120: fine(a, 7)
    for k in range(4):
        a("s_waitcnt lgkmcnt(%d)" % (0 if DIAG else (8, 6, 2, 0)[k]))
        if PDIAG and R == 120 and k == 0: fine(a, 9)
        a("buffer_store_dwordx4 %s, v%d, %s, s48 offen sc1" % (vr(R + 48 + 4 * k), vl, S4(sSRDT)))
        if k < 3:
            a("s_add_u32 s48, s48, %d" % (5 * 18432))


vX, vXC = 1, 2
vWR = [[3, 4, 5], [6, 7, 8]]
vWT = [[9, 10, 11], [12, 13, 14]]
vSW = 15
vCs = 16
vCo = 17
vAt, vOne = 18, 19
vPref = 20
ACC = 28
ACCC = ACC + 72
POOL0 = ACCC + 8
NPOOL = (256 - POOL0) // 4


class Frag:
    def __init__(self, key, reads, valid, release):
        self.key, self.reads, self.valid, self.release = key, reads, valid, release
        self.first = self.last = self.reg = None
        self.issued = 0


def acc(e, t, r):
    return ACC + e * 36 + (t * 3 + r) * 4


def build_stream(mh):
    groups = []
    for k in range(NG):
        e = k & 1
        slot = k % 3
        hi = 1 if slot == 2 else 0
        so = (slot - 2 * hi) * WST
        rel = k if k < NG - 3 else None
        if k < 6:
            wf = [[Frag(("w", k, a_, t), [("ds_read_b64_tr_b16 %%s, v%d offset:%d" % (vWR[hi][t], so + a_ * 6144 + h * 768), 2 * h, 2) for h in range(2)], k - 1, rel)
                   for t in range(3)] for a_ in range(5)]
        else:
            wf = [[Frag(("w", k, a_, t), [("ds_read_b128 %%s, v%d offset:%d" % (vWT[hi][t], so + a_ * 6144), 0, 4)], k - 1, rel)
                   for t in range(3)] for a_ in range(5)]
        xrel = k if k <= NG - 3 else None
        do = (k % NDB) * DPL
        X = [Frag(("x", k, s), [("ds_read_b128 %%s, v%d offset:%d" % (vX, do + s * 512), 0, 4)], k - 1, xrel) for s in range(7)]
        lo = [0, 1, 2] if (k // 2 + k) % 2 == 0 else [0, 1]
        cen = lo if mh == 0 else [x for x in range(5) if x not in lo]
        T = []
        for t in range(3):
            L = [(acc(e, t, r), wf[a_][t], X[r + a_]) for r in range(3) for a_ in range(5)]
            if t == 0:
                C = [(ACCC + 4 * e, wf[a_][0], Frag(("c", k, a_), [("ds_read_b128 %%s, v%d offset:%d" % (vXC, do + a_ * 512), 0, 4)], k - 1, xrel)) for a_ in cen]
                L = L[:10] + C + L[10:]
            T.append(L)
        groups.append(T)
    M, starts = [], []
    for k in range(NG - 2):
        starts.append(len(M))
        for t in range(3):
            M += groups[k][t]
    starts.append(len(M))
    for t in range(3):
        M += groups[NG - 2][t] + groups[NG - 1][t]
    return M, starts


def schedule(mh):
    M, starts = build_stream(mh)
    N = len(M)
    bpos = {k: starts[k] + BOFF for k in range(NG - 2)}
    bpos[0] = starts[0] + BOFF0
    bpos[NG - 2] = starts[NG - 2] + 3
    bpos[-1] = -1
    frags = []
    for i, (ac, w, x) in enumerate(M):
        for f in (w, x):
            if f.first is None:
                f.first = i
                frags.append(f)
            f.last = i
    for f in frags:
        f.dead = f.first - MARGIN
        if f.release is not None:
            f.dead = min(f.dead, bpos[f.release] - MARGIN)
    pend = sorted(frags, key=lambda f: (f.dead, f.first))
    free = list(range(NPOOL))
    freeat = {}
    for f in frags:
        freeat.setdefault(f.last, []).append(f)
    uses = {}
    for i, (ac, w, x) in enumerate(M):
        uses.setdefault(ac, []).append(i)

    tasks = []
    pairs = [(acc(0, t, r), acc(1, t, r), t, r) for t in range(3) for r in range(3)] + [(ACCC, ACCC + 4, 0, 9)]
    kk = AL / (2 * LAM)
    for bd, (cm, c0, c1) in ((starts[6], (None, LAM / P1, -2 * LAM / P1)), (starts[12], (kk, kk * BE / AL, kk * (AL / BE - BE / AL)))):
        tl = []
        for s0, s1, t, r in pairs:
            lastu = max(u for u in uses[s0] + uses[s1] if u < bd)
            nextu = min(u for u in uses[s0] + uses[s1] if u >= bd)
            if cm:
                l0 = max(u for u in uses[s0] if u < bd)
                tl.append((l0 + 8, nextu - 3, ["v_mul_f32 v%d, %s, v%d" % (s0 + i, fl(cm), s0 + i) for i in range(4)]))
            ops = ["v_fmac_f32 v%d, %s, v%d" % (s0 + i, fl(c0), s1 + i) for i in range(4)]
            ops += ["v_fmamk_f32 v%d, v%d, %s, v%d" % (s1 + i, s1 + i, fl(c1), s0 + i) for i in range(4)]
            tl.append((lastu + 8, nextu - 3, ops))
        tl.sort(key=lambda z: z[0])
        for e_, l_, ops in tl:
            tasks += [(e_, l_, o, None) for o in ops]
    tl = []
    for s0, s1, t, r in pairs:
        lastu = max(uses[s0] + uses[s1])
        ops = [("v_fmac_f32 v%d, %s, v%d" % (s0 + i, fl(BE / AL), s1 + i), None) for i in range(4)]
        ops += [("v_mul_f32 v%d, %s, v%d" % (s1 + i, fl(-2 * P2 * BE / AL), s1 + i), None) for i in range(4)]
        ops += [("v_fmac_f32 v%d, %s, v%d" % (s1 + i, fl(P2), s0 + i), None) for i in range(4)]
        if r == 9:
            if mh == 1:
                ops += [("ds_write_b128 v%d, %s" % (vCs, vr(s0)), ("E", 0)), ("ds_write_b128 v%d, %s offset:1024" % (vCs, vr(s1)), ("E", 0))]
        else:
            for e, s in ((0, s0), (1, s1)):
                ops += [("v_cvt_pk_bf16_f32 v%d, v%d, v%d" % (s, s, s + 1), None), ("v_cvt_pk_bf16_f32 v%d, v%d, v%d" % (s + 1, s + 2, s + 3), None),
                        ("ds_write_b64 v%d, %s offset:%d" % (vSW, vr(s, 2), t * 12288 + r * 1024 + e * 512), ("E", t))]
        tl.append((lastu + 8, ops, t))
    tl.sort(key=lambda z: z[0])
    for idx, (e_, ops, t) in enumerate(tl):
        tasks += [(e_, None, o, k) for o, k in ops]
        if t < 2 and all(z[2] != t for z in tl[idx + 1:]):
            tasks.append((e_, None, "@E", ("BAR", t)))

    gap2bar = {v: k for k, v in bpos.items() if k >= 0}
    out, q = [], []
    stats = dict(wait=0, minslack=10 ** 9)

    def wait_for(pred, now):
        last = -1
        for j, e in enumerate(q):
            if pred(e):
                last = j
        if last < 0:
            return
        if now > 12:
            stats["minslack"] = min(stats["minslack"], now - q[last][0])
        for j, e in enumerate(q):
            if e[0] <= now - WAITAGE:
                last = max(last, j)
        n = min(len(q) - 1 - last, 15)
        out.append("s_waitcnt lgkmcnt(%d)" % n)
        stats["wait"] += 1
        del q[:len(q) - n]

    def try_issue(gap, urgent):
        for f in pend:
            if bpos[f.valid] > gap:
                continue
            if f.key[0] in "xc" and f.first - gap > XLOOK:
                continue
            if urgent is not None and f.dead - gap > urgent:
                return False
            if f.reg is None:
                if not free:
                    return False
                f.reg = POOL0 + 4 * free.pop(0)
            fmt, ro, n = f.reads[f.issued]
            out.append(fmt % vr(f.reg + ro, n))
            q.append((gap, f, f.release))
            f.issued += 1
            if f.issued == len(f.reads):
                pend.remove(f)
            return True
        return False

    ebar = [None]

    def try_task(gap):
        if not tasks or tasks[0][0] > gap:
            return False
        e_, l_, o, k = tasks[0]
        if k and k[0] == "BAR":
            tasks.pop(0)
            ebar[0] = (gap, k[1])
            return try_task(gap)
        assert l_ is None or gap <= l_, ("task late", gap, tasks[0])
        tasks.pop(0)
        out.append(o)
        if k:
            q.append((gap, None, k))
        return True

    while pend and pend[0].dead < 0:
        assert try_issue(-1, None)
    seen = set()
    for i, (ac, w, x) in enumerate(M):
        for f in (w, x):
            assert f.issued == len(f.reads), (i, f.key)
        wait_for(lambda e: e[1] is w or e[1] is x, i)
        c = vr(ac) if ac in seen else "0"
        seen.add(ac)
        out.append("v_mfma_f32_16x16x32_bf16 %s, %s, %s, %s" % (vr(ac), vr(w.reg), vr(x.reg), c))
        for f in freeat.get(i, []):
            free.append((f.reg - POOL0) // 4)
        if i == ATOM_AT:
            out.append("@ATOM")
            continue
        if i in gap2bar:
            k = gap2bar[i]
            assert not any(f.release == k for f in pend), k
            wait_for(lambda e: e[2] == k, i)
            out.append("s_barrier")
            out.append("@T%d" % k)
            continue
        if ebar[0] and i - ebar[0][0] >= 6:
            t = ebar[0][1]
            wait_for(lambda e: e[2] == ("E", t), i)
            out.append("s_barrier")
            out.append("@E%d" % t)
            ebar[0] = None
            continue
        n = 0
        busy = bool(tasks) and tasks[0][0] <= i
        inwin = any(0 < i - b <= (WIN if k >= 5 else WINR) and k != 1 and k < NG - 3 for b, k in gap2bar.items())
        if not inwin and try_issue(i, 12 if (busy and not WIN) else None):
            n += 1
            if try_issue(i, URG):
                n += 1
        while n < 2 and try_task(i):
            n += 1
    assert not pend
    tail = []
    if ebar[0]:
        tail += ["s_waitcnt lgkmcnt(0)", "s_barrier"]
    tail.append("s_nop 7")
    for e_, l_, o, k in tasks:
        if k and k[0] == "BAR":
            tail += ["s_waitcnt lgkmcnt(0)", "s_barrier"]
        else:
            tail.append(o)
    sys.stderr.write("mh=%d mfma=%d lines=%d waits=%d minslack=%d tail=%d\n" % (mh, N, len(out), stats["wait"], stats["minslack"], len(tail)))
    nb = sum(1 for o in out + tail if o == "s_barrier")
    assert nb == (NG - 1) + 2, nb
    return out, tail


hLo, hMid, hHi, hE, hDW, hEW, hRd, hTE, hM0, hM1 = range(1, 11)
hTR = [11, 12]
hOut = 13
wP = [16, 17, 18]
wPoll, wPo = 19, 20
hC = 21
hTm = 28
hAcc = 36
hResL = {"A": [52, 56, 60, 64, 188, 192, 196, 200], "B": [52, 56, 60, 64, 164, 168, 172, 176]}
NRES = 8
hXA = 68
hXE = 164
hPr = 184
sH, sRaw = 46, 47
sG0, sGa, sG4, sT0_, sTa_, sWv = 94, 95, 96, 97, 98, 99
LATE = None


class VQ:
    def __init__(self, a):
        self.a, self.q = a, []

    def add(self, tag):
        self.q.append(tag)

    def wait(self, pred):
        last = -1
        for j, t in enumerate(self.q):
            if pred(t):
                last = j
        if last < 0:
            return
        n = len(self.q) - 1 - last
        self.a("s_waitcnt vmcnt(%d)" % min(n, 63))
        del self.q[:last + 1]


def bi(a):
    if BI:
        a("s_barrier")


def srdT(a):
    a("s_and_b32 s%d, s%d, 0xffff" % (sSRDT + 1, sSRDT + 1))
    a("s_mov_b32 s%d, 0x%x" % (sSRDT + 2, WT_BYTES))
    a("s_mov_b32 s%d, 0x20000" % (sSRDT + 3))


def build_T(ph, which):
    ops = []
    ops.append("v_and_b32 v%d, 8, v0" % hC)
    ops.append("v_cmp_ne_u32 vcc, 0, v%d" % hC)
    for m in range(3):
        c = [bf16(BT[2 * ph + e][2 * m]) | bf16(BT[2 * ph + e][2 * m + 1]) << 16 for e in range(2)]
        ops.append("v_mov_b32 v%d, 0x%x" % (hC + m, c[0]))
        ops.append("v_mov_b32 v%d, 0x%x" % (hC + 3 + m, c[1]))
    for m in range(3):
        ops.append("v_cndmask_b32 v%d, v%d, v%d, vcc" % (hC + m, hC + m, hC + 3 + m))
    for w in which:
        src = (hM0, hM1)[w]
        for d in range(-3, 3):
            ops.append("v_cmp_eq_i32 vcc, %d, v%d" % (d, src))
            ops.append("s_nop 1")
            for j in range(4):
                m = d + j
                if 0 <= m <= 2:
                    r = hTm + 4 * w + j
                    first = (m == 0)
                    ops.append("v_cndmask_b32 v%d, %s, v%d, vcc" % (r, "0" if first else "v%d" % r, hC + m))
    ops.append("s_nop 1")
    return ops


def wdma(k):
    p = (k // 2) % 3
    G = []
    for t in range(5):
        g = []
        if t == 0:
            g.append("s_mul_i32 s59, s%d, 96" % sK[p])
            if k < 6:
                g.append("s_add_u32 s59, s59, s%d" % (sG4 if k & 1 else sG0))
            else:
                term = (0 if k < 12 else 2) + (k & 1)
                g.append("s_add_u32 s59, s59, s%d" % sT0_)
                if term:
                    g.append("s_add_u32 s59, s59, %d" % (term * 5 * 18432))
        g.append("s_add_u32 m0, s%d, %d" % (sWv, (k % 3) * WST + t * 6144))
        g.append("s_add_u32 s59, s59, s%d" % (sGa if k < 6 else sTa_) if t else "s_nop 0")
        for j in range(3):
            if k < 6:
                g.append(("buffer_load_dwordx4 v%d, %s, s59 offen offset:%d lds" % (wP[j], S4(sSRDW), j * 1024), ("w", k)))
            else:
                g.append(("buffer_load_dwordx4 v%d, %s, s59 offen offset:%d sc1 lds" % (wP[0], S4(sSRDT), j * 1024), ("w", k)))
        G.append(g)
    return G


def wsetup(a, sel):
    a("s_mul_i32 s%d, s%d, 3072" % (sWv, sWv))
    a("s_mov_b32 s57, 92160")
    a("s_cmp_eq_u32 s%d, 1" % sOdd)
    a("s_cselect_b32 s%d, 18432, s57" % sGa)
    a("s_cselect_b32 s%d, s57, 18432" % sG4)
    a("s_mul_i32 s%d, s%d, s%d" % (sG0, sGa, sVf))
    a("s_lshl2_add_u32 s%d, s%d, s%d" % (sG0, sG0, sWv))
    a("s_mul_i32 s%d, s%d, s56" % (sGa, sGa))
    a("s_lshl2_add_u32 s%d, s%d, s%d" % (sG4, sG4, sG0))
    a("s_mul_i32 s%d, s%d, 5" % (sT0_, sOdd))
    a("s_add_u32 s%d, s%d, s%d" % (sT0_, sT0_, sVf))
    a("s_mul_i32 s%d, s%d, %d" % (sT0_, sT0_, 4 * 18432))
    a("s_add_u32 s%d, s%d, s%d" % (sT0_, sT0_, sWv))
    a("s_mul_i32 s%d, s56, 18432" % sTa_)
    a("v_lshlrev_b32 v%d, 4, v0" % wP[0])
    a("v_and_b32 v%d, 32, v0" % wP[1])
    a("v_xor_b32 v%d, v%d, v%d" % (wP[1], wP[1], wP[0]))
    a("v_xor_b32 v%d, 32, v%d" % (wP[2], wP[0]))

def gen_help(a, role, a3):
    vq = VQ(a)
    XA = lambda p, row, m: hXA + ((p * 4 + row) * 2 + m) * 4
    XE = lambda p, m: hXE + (p * 2 + m) * 4
    rr = [0]
    lab = [0]

    def xload(p, count_only=False):
        for i in range(5):
            if not count_only:
                a("s_add_u32 m0, s%d, %d" % (sRaw, (RAW0 if p == 0 else RAW1) + i * 1024))
                if i == 0:
                    a("s_mov_b32 s58, s%d" % sK[p])
                elif i >= 2:
                    a("s_add_u32 s58, s58, s101")
                else:
                    a("s_nop 0")
                a("buffer_load_dwordx4 v%d, %s, s58 offen%s lds" % ((hLo, hMid, hMid, hMid, hHi)[i], S4(sSRDX), XFLAG))
            vq.add(("x", p))

    def xread(p):
        vq.wait(lambda t: t == ("x", p))
        for row in range(4):
            for m in range(2):
                for h in range(2):
                    a("ds_read_b64_tr_b16 %s, v%d offset:%d" % (vr(XA(p, row, m) + 2 * h, 2), hTR[h], row * 256 + m * 8))

    def eread(ps):
        if role == "A":
            for p in ps:
                for m in range(2):
                    for h in range(2):
                        a("ds_read_b64_tr_b16 %s, v%d offset:%d" % (vr(XE(p, m) + 2 * h, 2), hTE, p * 2048 + h * 1024 + m * 8))

    def emit(g):
        for o in g:
            if isinstance(o, tuple):
                a(o[0])
                vq.add(o[1])
            else:
                a(o)

    def merge(G, chunks):
        G, chunks = list(G), list(chunks)
        while G or chunks:
            if G:
                emit(G.pop(0))
            if chunks:
                emit(chunks.pop(0))

    def rows_ops(srcs, T, dsts):
        c1, c2, c3 = [], [], []
        regs = []
        for i, (A0, A1) in enumerate(srcs):
            for m, A in enumerate((A0, A1)):
                c1.append("v_mfma_f32_16x16x32_bf16 %s, %s, %s, 0" % (vr(hAcc + (2 * i + m) * 4), vr(A), vr(T)))
        c2.append("s_nop %d" % (7 if len(srcs) == 1 else 5))
        for i in range(len(srcs)):
            rr[0] = (rr[0] + 1) % NRES
            r = hResL[role][rr[0]]
            regs.append(r)
            for m in range(2):
                d = hAcc + (2 * i + m) * 4
                c2.append("v_cvt_pk_bf16_f32 v%d, v%d, v%d" % (r + 2 * m, d, d + 1))
                c2.append("v_cvt_pk_bf16_f32 v%d, v%d, v%d" % (r + 2 * m + 1, d + 2, d + 3))
        for r, (ad, off) in zip(regs, dsts):
            c3.append("ds_write_b128 v%d, %s offset:%d" % (ad, vr(r), off))
        return [c1, c2, c3]

    def rows(s, rws):
        p = s % 3
        return rows_ops([(XA(p, r, 0), XA(p, r, 1)) for r in rws], hTm, [(hDW, ((2 * s) % NDB) * DPL + r * 512) for r in rws])

    def extra_ops(s):
        p = s % 3
        return rows_ops([(XE(p, 0), XE(p, 1))], hTm + 4, [(hEW, ((2 * s) % NDB) * DPL)])

    def extra(s, chunks):
        if role != "A":
            return
        lab[0] += 1
        a("s_cmp_lg_u32 s%d, %d" % (sH, (s % 3) & 1))
        a("s_cbranch_scc1 L_ex%d" % lab[0])
        for c in chunks:
            emit(c)
        a.label("L_ex%d" % lab[0])

    def endint(k):
        if role == "B":
            vq.wait(lambda t: t == ("w", k + 1))
        a("s_waitcnt lgkmcnt(0)")
        a("s_barrier")

    which = (0, 1) if role == "A" else (0,)
    TB = lambda ph: [build_T(ph, which)]
    xload(0, True)
    def eload(p):
        if role != "A":
            return
        for i in range(2):
            a("s_mov_b32 m0, %d" % (RAWE + p * 2048 + i * 1024))
            if i == 0:
                a("s_mov_b32 s58, s%d" % sK[p])
            else:
                a("s_add_u32 s58, s58, s101")
            a("s_cmp_lg_u32 s%d, %d" % (sH, p & 1))
            a("s_cbranch_scc1 L_el%d" % (2 * p + i))
            a("buffer_load_dwordx4 v%d, %s, s58 offen%s lds" % (hE, S4(sSRDX), XFLAG))
            a.label("L_el%d" % (2 * p + i))

    def second():
        bi(a)
        xload(1)
        eload(1)
        eload(2)
        if role == "A":
            vq.add(("x", 1))
            vq.add(("x", 1))

    eload(0)
    if XORD == "A":
        second()
    a("s_branch L_late%s" % role)
    a.label("@SPLIT")
    a.label("L_late%s" % role)
    a.l += LATE.l
    merge([], TB(0))
    if role == "B":
        srd(a, sSRDG, 10, 256)
        srdT(a)
        if FLAGB:
            a("v_min_u32 v%d, %d, v0" % (wPo, NITEM // 4 - 1))
            a("v_lshlrev_b32 v%d, 2, v%d" % (wPo, wPo))
        else:
            a("v_and_b32 v%d, 3, v0" % wPo)
            a("v_lshlrev_b32 v%d, 6, v%d" % (wPo, wPo))
        a("s_and_b32 s%d, s%d, 1" % (sWv, sH))
        wsetup(a, None)
        srd(a, sSRDW, 6, W_BYTES)
    if XORD == "B":
        second()
    a("s_setprio 3")
    fine(a, 3)
    xread(0)
    eread([0])
    if XORD == "C":
        second()
    for h in range(2):
        a("v_add_u32 v%d, %d, v%d" % (hTR[h], RAW1 - RAW0, hTR[h]))
    fine(a, 4)
    a("s_waitcnt lgkmcnt(%d)" % (0 if DIAG else 8 + (4 if role == "A" else 0)))
    merge([], rows(0, (0, 1)))
    a("s_waitcnt lgkmcnt(%d)" % (0 if DIAG else 2))
    merge([], rows(0, (2, 3)))
    extra(0, extra_ops(0))
    if XORD == "D":
        second()
    fine(a, 5)
    endint(-1)
    fine(a, 6)
    pendw = []
    pendx = None
    for k in range(0, NG - 1):
        G = wdma(k + 2) if (role == "B" and k + 2 < NG) else []
        work = []
        if k == PROBE:
            fine(a, 8)
        emit(pendw)
        pendw = []
        if pendx:
            extra(pendx[0], [pendx[1]])
            pendx = None
        if k == POLL_I and role == "B":
            a("buffer_load_dword v%d, v%d, %s, 0 offen sc1" % (wPoll, wPo, S4(sSRDG)))
            vq.add(("poll",))
        B = role == "B"
        if k == 0:
            merge(wdma(1) if B and NCW < 2 else [], [])
            G = []
            xread(1)
            eread([1, 2])
            a("s_waitcnt lgkmcnt(%d)" % (0 if DIAG else min(15, 8 + (8 if role == "A" else 0))))
            c0 = rows(1, (0, 1))
            merge([], c0[:2])
            a("s_waitcnt lgkmcnt(0)")
            c1 = rows(1, (2, 3))
            merge([], c1[:2])
            c = extra_ops(1)
            extra(1, c[:2])
            pendw = c0[2] + c1[2]
            pendx = (1, c[2])
        if k == 1:
            merge(wdma(2) if B else [], [])
            xload(2)
            G = []
        if k == 2:
            merge(wdma(3) if B else [], [])
            xread(2)
            emit(G.pop(0) if G else [])
            a("s_waitcnt lgkmcnt(0)")
            c0 = rows(2, (0, 1))
            work += c0[:2]
            pendw = c0[2]
        s = (k + 3) // 2
        if k >= 2 and s <= 8:
            if k % 2 == 1 and s % 3 == 0:
                work += TB(s // 3)
            c = rows(s, (0, 1) if k % 2 == 1 else (2, 3))
            work += c[:2]
            pendw = pendw + c[2]
        merge(G, work)
        if k >= 2 and k % 2 == 0 and s <= 8:
            c = extra_ops(s)
            extra(s, c[:2])
            pendx = (s, c[2])
        if k == PROBE:
            fine(a, 9)
        endint(k)
        if k == PROBE:
            fine(a, 10)
        if k == POLL_I and role == "B":
            vq.wait(lambda t: t == ("poll",))
            a("v_cmp_eq_u32 vcc, 0x%x, v%d" % ((0x01010101 if FLAGB else NITEM // 4) + FORCE_FALLBACK, wPoll))
            a("s_cmp_eq_u64 vcc, exec")
            a("s_cbranch_scc0 L_slow")
            a.label("L_ready")
            fine(a, 7)
    if role == "A":
        a("s_branch L_xout")
        return
    a.label("L_xout")
    for t in range(3):
        a("s_barrier")
        for i in range(3):
            a("ds_read_b128 %s, v%d offset:%d" % (vr(hXA + (t * 3 + i) * 4), hRd, t * 12288 + i * 1024))
        for i in range(3):
            a("s_waitcnt lgkmcnt(%d)" % (0 if DIAG else 2 - i))
            a("buffer_store_dwordx4 %s, v%d, %s, s%d offen%s" % (vr(hXA + (t * 3 + i) * 4), hOut + i, S4(sSRDO), sSeg[t], STFLAG))
    fine(a, 11)
    if DIAG:
        a("s_waitcnt vmcnt(0)")
    stamp(a, 3)
    stamp_flush(a)
    a("s_endpgm")
    a = a3
    a.label("L_slow")
    a("s_mov_b32 s59, 0")
    a.label("L_slow1")
    a("buffer_load_dword v%d, v%d, %s, 0 offen sc1" % (wPoll, wPo, S4(sSRDG)))
    a("s_waitcnt vmcnt(0)")
    a("v_cmp_eq_u32 vcc, 0x%x, v%d" % ((0x01010101 if FLAGB else NITEM // 4) + FORCE_FALLBACK, wPoll))
    a("s_cmp_eq_u64 vcc, exec")
    a("s_cbranch_scc1 L_ready")
    a("s_sleep 16")
    a("s_add_u32 s59, s59, 1")
    a("s_cmp_lt_u32 s59, %d" % (3 if FORCE_FALLBACK else MAXPOLL))
    a("s_cbranch_scc1 L_slow1")
    a("s_add_u32 s100, s%d, %d" % (sRaw, RAW1))
    a("s_mov_b32 s59, 0")
    a.label("L_slow2")
    producer_loads(a, hPr, 59)
    a("s_waitcnt vmcnt(0)")
    producer_loads2(a, hPr)
    producer_rest(a, hPr, "s100")
    a("s_add_u32 s59, s59, 1")
    a("s_cmp_lt_u32 s59, %d" % NITEM)
    a("s_cbranch_scc1 L_slow2")
    a("s_waitcnt vmcnt(0)")
    a("s_branch L_ready")


def gen():
    a = Asm()
    a.l.append("; @launch grid=(256,1,1) block=(512,1,1) lds=%d" % LDS_TOTAL)
    a.l.append('.amdgcn_target "amdgcn-amd-amdhsa--gfx950"')
    a.l.append(".text")
    a.l.append(".globl %s_kernel" % NAME)
    a.l.append(".p2align 12")
    a.l.append(".p2align 8")
    a.l.append(".type %s_kernel,@function" % NAME)
    a.label("%s_kernel" % NAME)
    a("s_cmp_lt_u32 s2, 256")
    a("s_cbranch_scc1 L_go")
    a("s_endpgm")
    a.label("L_go")
    a("s_load_dwordx8 s[4:11], s[0:1], 0")
    a("s_load_dwordx2 s[%d:%d], s[0:1], 32" % (sSRDT, sSRDT + 1))
    a("v_lshrrev_b32 v1, 6, v0")
    a("s_nop 0")
    a("v_readfirstlane_b32 s%d, v1" % sWave)
    a("v_and_b32 v0, 63, v0")
    if DIAG:
        a("v_mov_b32 v%d, 0" % vSt)
        a("s_memrealtime s[90:91]")
        a("s_memtime s[92:93]")
        for i in range(12):
            a("s_mov_b32 s%d, 0" % (66 + 2 * i))
    a("s_cmp_lg_u32 s%d, 2" % sWave)
    a("s_cbranch_scc1 L_n0")
    a("s_and_b32 s59, s2, 7")
    a("s_mul_i32 s59, s59, 23")
    a("s_lshr_b32 s58, s2, 3")
    a("s_add_u32 s59, s59, s58")
    a("s_cmp_ge_u32 s58, 23")
    a("s_cselect_b32 s59, 255, s59")
    a("s_cmp_lt_u32 s59, %d" % NITEM)
    a("s_cbranch_scc1 L_prod")
    bi(a)
    a("s_branch L_noprod0")
    a.label("L_prod")
    a("s_setprio 3")
    producer_loads(a, 120, 59)
    if PDIAG: fine(a, 3)
    a("s_waitcnt lgkmcnt(0)")
    srd(a, sSRDW, 6, W_BYTES)
    producer_loads2(a, 120)
    if PDIAG: fine(a, 4)
    a("s_branch L_prod2")
    a.label("L_n0")
    a("s_cmp_lt_u32 s%d, 4" % sWave)
    a("s_cbranch_scc1 L_c")
    a.label("L_h")

    def decode1(a):
        a("s_bfe_u32 s%d, s2, 0x20003" % sQ)
        a("s_lshr_b32 s%d, s%d, 1" % (sUf, sQ))
        a("s_and_b32 s%d, s%d, 1" % (sOdd, sQ))
        a("s_xor_b32 s%d, s%d, s%d" % (sVf, sOdd, sUf))
        a("s_lshl_b32 s56, s%d, 1" % sVf)
        a("s_sub_u32 s56, 1, s56")
        a("s_bitcmp1_b32 s2, 5")
        a("s_cselect_b32 s%d, 0, 128" % sK[0])
        a("s_cselect_b32 s%d, 64, 0" % sK[1])
        a("s_cselect_b32 s%d, 128, 64" % sK[2])

    def decode2(a):
        a("s_bfe_u32 s48, s2, 0x10005")
        a("s_bfe_u32 s49, s2, 0x10006")
        a("s_lshr_b32 s50, s2, 7")
        a("s_and_b32 s51, s2, 1")
        a("s_lshl1_add_u32 s50, s51, s50")
        a("s_bfe_u32 s51, s2, 0x20001")
        a("s_lshl_b32 s59, s%d, 3" % sQ)
        a("s_lshr_b32 s57, 0x0c1b0000, s59")
        a("s_and_b32 s57, s57, 0xff")
        a("s_lshr_b32 s58, 0x000c1b00, s59")
        a("s_and_b32 s58, s58, 0xff")
        a("s_mul_i32 s59, s51, 28")
        a("s_add_u32 s57, s57, s59")
        a("s_mul_i32 s59, s50, 28")
        a("s_add_u32 s58, s58, s59")
        a("s_lshl1_add_u32 s57, s57, s49")
        a("s_lshl1_add_u32 s58, s58, s48")
        a("s_mul_i32 s57, s57, 224")
        a("s_add_u32 s57, s57, s58")
        a("s_mul_i32 s%d, s57, 192" % sOO)
        a("s_mov_b32 s57, 86016")
        a("s_cmp_eq_u32 s%d, 1" % sOdd)
        a("s_cselect_b32 s%d, s57, 384" % sSx)
        a("s_cselect_b32 s%d, 384, s57" % sSy)
        a("s_cselect_b32 s46, s50, s51")
        a("s_cselect_b32 s47, s51, s50")
        a("s_mul_i32 s%d, s%d, s56" % (sSy, sSy))

    def decode3(a):
        a("s_lshl_b32 s57, s%d, 3" % sQ)
        for t, tab in enumerate((0x00804000, 0x40008040, 0x80400080)):
            a("s_lshr_b32 s58, 0x%08x, s57" % tab)
            a("s_and_b32 s%d, s58, 0xff" % sSeg[t])

    global LATE
    a("s_setprio %d" % HPRIO0)
    a("v_lshrrev_b32 v21, 4, v0")
    a("v_bfe_u32 v22, v0, 2, 2")
    a("v_and_b32 v23, 3, v0")
    a("v_bfrev_b32 v24, 2")
    decode1(a)
    decode2(a)
    a("s_mul_i32 s58, s%d, 3" % sVf)
    a("s_cmp_eq_u32 s46, s58")
    a("s_cselect_b32 s58, 2, 0")
    a("s_sub_u32 s%d, s%d, 4" % (sH, sWave))
    a("s_cmp_eq_u32 s%d, 0" % sH)
    a("s_cselect_b32 s58, s58, 0")
    a("v_cmp_gt_u32 vcc, s58, v21")
    a("v_mul_i32_i24 v25, s%d, v21" % sSy)
    a("v_mad_i32_i24 v25, v22, s%d, v25" % sSx)
    a("v_lshl_add_u32 v25, v23, 4, v25")
    a("s_lshl2_add_u32 s57, s%d, -2" % sH)
    a("s_mul_i32 s57, s57, s%d" % sSy)
    a("s_add_u32 s57, s57, s%d" % sOO)
    a("s_lshl1_add_u32 s57, s%d, s57" % sSx)
    a("v_add_u32 v26, s57, v25")
    a("v_cndmask_b32 v%d, v26, v24, vcc" % hMid)
    a("s_lshl_b32 s101, s%d, 2" % sSx)
    a("s_mul_i32 s59, s%d, 3" % sUf)
    a("s_cmp_eq_u32 s47, s59")
    a("s_cselect_b32 s57, 2, 0")
    a("s_cmp_eq_u32 s%d, 0" % sUf)
    a("s_cselect_b32 s58, s57, 0")
    a("s_cselect_b32 s57, 0, s57")
    a("s_sub_u32 s57, 4, s57")
    a("v_cmp_gt_u32 vcc, s58, v22")
    a("v_subrev_u32 v26, s101, v%d" % hMid)
    a("s_mul_i32 s%d, s%d, 5120" % (sRaw, sH))
    a("v_cndmask_b32 v%d, v26, v24, vcc" % hLo)
    a("v_cmp_le_u32 vcc, s57, v22")
    fine(a, 1)
    a("s_waitcnt lgkmcnt(0)")
    fine(a, 2)
    srd(a, sSRDX, 4, X_BYTES)
    a("v_cndmask_b32 v%d, v%d, v24, vcc" % (hHi, hMid))
    for i in range(5):
        a("s_add_u32 m0, s%d, %d" % (sRaw, RAW0 + i * 1024))
        if i == 0:
            a("s_mov_b32 s58, s%d" % sK[0])
        elif i >= 2:
            a("s_add_u32 s58, s58, s101")
        else:
            a("s_nop 0")
        a("buffer_load_dwordx4 v%d, %s, s58 offen%s lds" % ((hLo, hMid, hMid, hMid, hHi)[i], S4(sSRDX), XFLAG))
    a("s_sub_u32 s100, 1, s%d" % sUf)
    a("s_mul_i32 s100, s100, 6")
    a("s_cmp_ge_u32 s%d, 2" % sH)
    a("s_cbranch_scc1 L_hB")

    l = LATE = Asm()
    srd(l, sSRDO, 8, X_BYTES)
    decode3(l)
    l("v_and_b32 v24, 15, v0")
    l("v_and_b32 v25, 7, v0")
    l("v_lshlrev_b32 v26, 2, v21")
    l("v_sub_u32 v%d, v26, v25" % hM0)
    l("v_lshrrev_b32 v26, 1, v25")
    l("v_and_b32 v26, 2, v26")
    l("v_xor_b32 v26, v26, v21")
    l("v_lshlrev_b32 v26, 4, v26")
    l("v_lshl_add_u32 v26, v25, 6, v26")
    l("v_lshrrev_b32 v28, 3, v24")
    l("v_mul_u32_u24 v28, %d, v28" % DPL)
    l("s_lshl_b32 s58, s%d, 11" % sH)
    l("s_add_u32 s58, s58, %d" % DBASE)
    l("v_add3_u32 v%d, v26, v28, s58" % hDW)
    l("v_bfe_u32 v29, v0, 1, 2")
    l("v_and_b32 v30, 1, v0")
    l("v_cmp_eq_u32 vcc, v29, v21")
    l("v_sub_u32 v26, 0, v30")
    l("v_add_u32 v30, s100, v30")
    l("v_cndmask_b32 v%d, 64, v26, vcc" % hM1)
    l("s_lshr_b32 s58, s100, 1")
    l("s_and_b32 s58, s58, 2")
    l("v_xor_b32 v26, s58, v21")
    l("v_lshlrev_b32 v26, 4, v26")
    l("v_lshl_add_u32 v26, v30, 6, v26")
    l("v_lshl_add_u32 v26, v29, 9, v26")
    l("s_mov_b32 s58, %d" % (DBASE + 16 * 512))
    l("v_add3_u32 v%d, v26, v28, s58" % hEW)
    l("v_lshlrev_b32 v24, 4, v24")
    l("s_add_u32 s58, s%d, %d" % (sRaw, RAW0))
    for h in range(2):
        l("v_lshl_add_u32 v26, v21, 1, %d" % h)
        l("v_min_u32 v26, 4, v26")
        l("v_lshl_add_u32 v26, v26, 10, v24")
        l("v_add_u32 v%d, s58, v26" % hTR[h])
    l("v_lshl_add_u32 v26, v21, 8, v24")
    l("v_add_u32 v%d, %d, v26" % (hTE, RAWE))
    l("v_lshrrev_b32 v24, 2, v0")
    l("v_bfe_u32 v26, v0, 3, 2")
    l("v_xor_b32 v26, v26, v23")
    l("v_lshlrev_b32 v26, 4, v26")
    l("v_lshl_add_u32 v26, v24, 6, v26")
    l("s_mul_i32 s58, s%d, 3072" % sH)
    l("s_add_u32 s58, s58, %d" % STG)
    l("v_add_u32 v%d, s58, v26" % hRd)
    l("v_and_b32 v26, 7, v24")
    l("v_lshrrev_b32 v24, 3, v24")
    l("v_lshl_add_u32 v26, v26, 1, v24")
    l("v_mul_i32_i24 v26, s%d, v26" % sSx)
    l("v_lshl_add_u32 v26, v23, 4, v26")
    l("s_mul_i32 s58, s%d, 3" % sH)
    l("s_mul_i32 s58, s58, s%d" % sSy)
    l("s_add_u32 s58, s58, s%d" % sOO)
    l("v_add_u32 v%d, s58, v26" % hOut)
    for i in range(2):
        l("v_add_u32 v%d, s%d, v%d" % (hOut + i + 1, sSy, hOut + i))

    slow = Asm()
    far = Asm()
    a("s_lshl1_add_u32 s57, s100, -2")
    a("s_mul_i32 s57, s57, s%d" % sSx)
    a("s_mul_i32 s58, s%d, 14" % sSy)
    a("s_add_u32 s57, s57, s58")
    a("s_add_u32 s57, s57, s%d" % sOO)
    a("v_add_u32 v%d, s57, v25" % hE)
    hA = Asm()
    gen_help(hA, "A", slow)
    cut = hA.l.index("@SPLIT:")
    a.l += hA.l[:cut]
    far.l += hA.l[cut + 1:]
    a.label("L_hB")
    hB = Asm()
    gen_help(hB, "B", slow)
    cut = hB.l.index("@SPLIT:")
    a.l += hB.l[:cut]
    far.l += hB.l[cut + 1:]

    a.label("L_c")
    a("s_cmp_lg_u32 s%d, 0" % sWave)
    a("s_cbranch_scc1 L_cw")
    a("s_getpc_b64 s[56:57]")
    a.label("L_pc")
    a("s_add_u32 s56, s56, %s_kernel + 2048 - L_pc" % NAME)
    a("s_addc_u32 s57, s57, 0")
    a("s_lshr_b32 s58, s2, 3")
    a("s_mul_i32 s59, s58, 43")
    a("s_lshr_b32 s59, s59, 8")
    a("s_mul_i32 s59, s59, 6")
    a("s_sub_u32 s58, s58, s59")
    a("s_lshl_b32 s58, s58, 13")
    a("v_lshlrev_b32 v2, 7, v0")
    a("v_add_u32 v2, s58, v2")
    a("global_load_dword v%d, v2, s[56:57]" % vPref)
    bi(a)
    a("s_branch L_noprod0")
    a.label("L_cw")
    a("s_lshr_b32 s%d, s%d, 1" % (sWv, sWave))
    decode1(a)
    wsetup(a, None)
    a("s_setprio %d" % WPRIO0)
    a("s_waitcnt lgkmcnt(0)")
    srd(a, sSRDW, 6, W_BYTES)
    for k in range(NCW):
        for g in wdma(k):
            for o in g:
                a(o[0] if isinstance(o, tuple) else o)
        if k == 0:
            fine(a, 0)
            a("s_setprio %d" % WPRIO1)
            bi(a)
    fine(a, 1)
    a("s_branch L_noprod0")
    a.label("L_prod2")
    srdT(a)
    producer_rest(a, 120, "%d" % PSCR)
    fine(a, 1)
    bi(a)
    a("v_bfrev_b32 v%d, 2" % vAt)
    if FLAGB:
        a("v_writelane_b32 v%d, s59, 0" % vAt)
    else:
        a("s_and_b32 s58, s59, 3")
        a("s_lshl_b32 s58, s58, 6")
        a("v_writelane_b32 v%d, s58, 0" % vAt)
    a("s_branch L_noprod")
    a.l += far.l
    w3 = slow

    a.label("L_noprod0")
    a("v_bfrev_b32 v%d, 2" % vAt)
    a.label("L_noprod")
    a("s_waitcnt lgkmcnt(0)")
    srd(a, sSRDO, 8, X_BYTES)
    srd(a, sSRDG, 10, 256)
    a("v_mov_b32 v%d, 1" % vOne)
    decode1(a)
    decode2(a)
    decode3(a)
    a("s_and_b32 s50, s%d, 1" % sWave)
    a("s_lshr_b32 s51, s%d, 1" % sWave)
    T = 108
    vn, vg, vq, vc, t0, t1, t2 = range(T, T + 7)
    a("v_and_b32 v%d, 15, v0" % vn)
    a("v_lshrrev_b32 v%d, 4, v0" % vg)
    a("v_lshrrev_b32 v%d, 2, v%d" % (vq, vn))
    a("v_and_b32 v%d, 3, v0" % vc)
    a("v_lshl_add_u32 v%d, v%d, 3, v%d" % (t0, vg, vq))
    a("v_mul_u32_u24 v%d, 192, v%d" % (t0, t0))
    a("v_lshl_add_u32 v%d, v%d, 3, v%d" % (t0, vc, t0))
    a("v_and_b32 v%d, 1, v%d" % (t1, vg))
    a("v_xor_b32 v%d, s51, v%d" % (t1, t1))
    a("v_lshl_add_u32 v%d, v%d, 5, v%d" % (t0, t1, t0))
    a("v_lshlrev_b32 v%d, 4, v0" % t1)
    a("s_lshl_b32 s58, s51, 10")
    a("v_add_u32 v%d, s58, v%d" % (t1, t1))
    for t in range(3):
        a("v_add_u32 v%d, s%d, v%d" % (vWR[0][t], sSeg[t], t0))
        a("v_add_u32 v%d, %d, v%d" % (vWR[1][t], 2 * WST, vWR[0][t]))
        a("s_lshl_b32 s58, s%d, 5" % sSeg[t])
        a("v_add_u32 v%d, s58, v%d" % (vWT[0][t], t1))
        a("v_add_u32 v%d, %d, v%d" % (vWT[1][t], 2 * WST, vWT[0][t]))
    a("v_lshrrev_b32 v%d, 1, v%d" % (t0, vn))
    a("v_and_b32 v%d, 2, v%d" % (t0, t0))
    a("v_xor_b32 v%d, v%d, v%d" % (t0, t0, vg))
    a("v_lshlrev_b32 v%d, 4, v%d" % (t0, t0))
    a("v_and_b32 v%d, 7, v%d" % (t1, vn))
    a("v_lshl_add_u32 v%d, v%d, 6, v%d" % (t0, t1, t0))
    a("v_lshrrev_b32 v%d, 3, v%d" % (t2, vn))
    a("v_mul_u32_u24 v%d, 3072, v%d" % (t2, t2))
    a("s_mul_i32 s58, s50, 1536")
    a("s_add_u32 s58, s58, %d" % DBASE)
    a("v_add3_u32 v%d, v%d, v%d, s58" % (vX, t0, t2))
    a("v_lshrrev_b32 v%d, 1, v%d" % (t0, vg))
    a("s_lshl_b32 s58, s51, 1")
    a("v_add_u32 v%d, s58, v%d" % (t0, t0))
    a("v_bfe_u32 v%d, v%d, 1, 2" % (T + 7, vn))
    a("v_xor_b32 v%d, v%d, v%d" % (t0, t0, T + 7))
    a("v_lshlrev_b32 v%d, 4, v%d" % (t0, t0))
    a("v_lshl_add_u32 v%d, v%d, 6, v%d" % (t0, t1, t0))
    a("v_lshl_add_u32 v%d, v%d, 1, v%d" % (t0, t2, t0))
    a("v_and_b32 v%d, 1, v%d" % (t1, vg))
    a("v_lshl_add_u32 v%d, v%d, 3, v%d" % (t0, t1, t0))
    a("s_mul_i32 s58, s50, 3072")
    a("s_add_u32 s58, s58, %d" % STG)
    a("v_add_u32 v%d, s58, v%d" % (vSW, t0))
    a("s_sub_u32 s59, 1, s%d" % sUf)
    a("s_mul_i32 s59, s59, 6")
    a("v_and_b32 v%d, 1, v0" % t0)
    a("v_add_u32 v%d, s59, v%d" % (t0, t0))
    a("v_lshrrev_b32 v%d, 1, v%d" % (t1, t0))
    a("v_and_b32 v%d, 2, v%d" % (t1, t1))
    a("v_xor_b32 v%d, v%d, v%d" % (t1, t1, vg))
    a("v_lshlrev_b32 v%d, 4, v%d" % (t1, t1))
    a("v_lshl_add_u32 v%d, v%d, 6, v%d" % (t1, t0, t1))
    a("v_lshl_add_u32 v%d, v%d, 9, v%d" % (t1, T + 7, t1))
    a("v_add_u32 v%d, %d, v%d" % (vXC, DBASE + 12 * 512, t1))
    a("v_add_u32 v%d, 12, v%d" % (t1, T + 7))
    a("v_mul_i32_i24 v%d, s%d, v%d" % (t1, sSy, t1))
    a("v_lshlrev_b32 v%d, 1, v%d" % (t0, t0))
    a("v_mad_i32_i24 v%d, v%d, s%d, v%d" % (t1, t0, sSx, t1))
    a("v_lshl_add_u32 v%d, v%d, 3, v%d" % (t1, vg, t1))
    a("s_lshl_b32 s58, s51, 5")
    a("s_add_u32 s58, s58, s%d" % sOO)
    a("s_cmp_eq_u32 s%d, 3" % sQ)
    a("s_cselect_b32 s59, 0, 8")
    a("v_cmp_gt_u32 vcc, s59, v%d" % vn)
    a("v_add_u32 v%d, s58, v%d" % (t1, t1))
    a("v_bfrev_b32 v%d, 2" % t0)
    a("v_cndmask_b32 v%d, v%d, v%d, vcc" % (vCo, t0, t1))
    a("s_lshl_b32 s58, s51, 11")
    a("s_add_u32 s58, s58, %d" % CSCR)
    a("v_lshlrev_b32 v%d, 4, v0" % t0)
    a("v_add_u32 v%d, s58, v%d" % (vCs, t0))
    a("s_add_u32 s59, s%d, s%d" % (sSeg[0], sSx))
    a("s_setprio 2")

    def atom():
        a("s_waitcnt vmcnt(0)")
        a("%s v%d, v%d, %s, 0 offen sc1" % ("buffer_store_byte" if FLAGB else "buffer_atomic_add", vOne, vAt, S4(sSRDG)))
        fine(a, 2)

    a("s_cmp_eq_u32 s50, 1")
    a("s_cbranch_scc1 L_c1")
    marks = {"@T0": 3, "@T1": 4, "@T3": 5, "@T5": 6, "@T7": 7, "@T11": 8, "@T16": 9, "@E0": 10, "@E1": 11}
    if MARKS:
        marks = {"@T%d" % k: i for i, k in enumerate(MARKS)}
    if PDIAG:
        marks = {"@T1": 10, "@T3": 11}
    for mh in range(2):
        lines, tail = schedule(mh)
        if mh == 1:
            a.label("L_c1")
        if mh == 1:
            a("s_waitcnt vmcnt(%d)" % (15 * (NCW - 1)))
        elif ATOM_AT < 0:
            atom()
        a("s_barrier")
        stamp(a, 1)
        first = True
        for t in lines:
            if t == "@ATOM":
                if mh == 0:
                    atom()
            elif t.startswith("@"):
                if t in marks:
                    fine(a, marks[t])
            else:
                if t == "s_barrier" and first:
                    first = False
                    if mh == 1:
                        a("s_waitcnt vmcnt(0)")
                a(t)
        stamp(a, 2)
        for t in tail:
            a(t)
        R = POOL0
        if mh == 0:
            a("ds_read_b128 %s, v%d" % (vr(R), vCs))
            a("ds_read_b128 %s, v%d offset:1024" % (vr(R + 4), vCs))
            a("s_waitcnt lgkmcnt(%d)" % (0 if DIAG else 2))
        else:
            a("s_waitcnt lgkmcnt(0)")
        a("s_barrier")
        if mh == 0:
            a("s_waitcnt lgkmcnt(0)")
            for i in range(8):
                a("v_add_f32 v%d, v%d, v%d" % (ACCC + i, ACCC + i, R + i))
            for e in range(2):
                s = ACCC + 4 * e
                a("v_cvt_pk_bf16_f32 v%d, v%d, v%d" % (s, s, s + 1))
                a("v_cvt_pk_bf16_f32 v%d, v%d, v%d" % (s + 1, s + 2, s + 3))
                a("buffer_store_dwordx2 %s, v%d, %s, s%d offen%s" % (vr(s, 2), vCo, S4(sSRDO), 59 if e else sSeg[0], STFLAG))
        if DIAG:
            a("s_waitcnt vmcnt(0)")
        stamp(a, 3)
        stamp_flush(a)
        a("s_endpgm")
    a.l += w3.l
    a.l.append(".fill (%d" % CODE_END + " - (. - %s_kernel)) / 4, 4, 0xbf800000" % NAME)
    a("s_endpgm")

    a.l.append('.section .rodata,"a"')
    a.l.append(".p2align 6")
    a.l.append(".amdhsa_kernel %s_kernel" % NAME)
    a.l.append("  .amdhsa_next_free_vgpr 256")
    a.l.append("  .amdhsa_next_free_sgpr 102")
    a.l.append("  .amdhsa_accum_offset 256")
    a.l.append("  .amdhsa_group_segment_fixed_size 0")
    a.l.append("  .amdhsa_kernarg_size 40")
    a.l.append("  .amdhsa_user_sgpr_count 2")
    a.l.append("  .amdhsa_user_sgpr_kernarg_segment_ptr 1")
    a.l.append("  .amdhsa_system_sgpr_workgroup_id_x 1")
    a.l.append("  .amdhsa_float_denorm_mode_32 3")
    a.l.append(".end_amdhsa_kernel")
    return a.text()


if __name__ == "__main__":
    if "-diag" in sys.argv:
        DIAG = True
        sys.argv.remove("-diag")
    for kv in [x for x in sys.argv[1:] if "=" in x]:
        k, v = kv.split("=", 1)
        globals()[k] = eval(v)
        sys.argv.remove(kv)
    out = sys.argv[1] if len(sys.argv) > 1 else "cdna_kernels/%s.s" % NAME
    open(out, "w").write(gen())
    print("wrote", out)
```

```python
import sys, struct

NAME = "standalone__dilated_atrous__vision"

DIAG = False
STFLAG = " sc1"
XFLAG = " nt"
BOFF = 14
WIN = 10
WINR = 6
URG = 8
BOFF0 = 20
PK = False
VPRIO = 0
MARGIN = 7
XLOOK = 30
WAITAGE = 9
ATOM_AT = -1
POLL_I = 3
MAXPOLL = 2000
HPRIO = 0
FORCE_FALLBACK = False
PROBE = -99
PDIAG = False
AMP = None
AMPX = 2
ODIAG = 0
NCW = 1
MARKS = None
NPRE = 3
FLAGB = False
BI = False
XORD = "B"
WPRIO1 = 1
WPRIO0 = 3
HPRIO0 = 3
CODE_END = 2048 + 3 * 8192 * 2 + 256

P1, P2 = 1.5, 0.625
LAM = (P1 * P2) ** 2
KAP = P1 * P1 + P2 * P2
N1 = 2 * P1 * P1 * (P1 * P1 - P2 * P2)
N2 = 2 * P2 * P2 * (P2 * P2 - P1 * P1)
AL, BE = (1 + P1 / P2) / 2, (1 - P1 / P2) / 2
BT = [[LAM, 0, -KAP, 0, 1, 0], [0, LAM, 0, -KAP, 0, 1],
      [0, -P1 * P2 * P2, -P2 * P2, P1, 1, 0], [0, P1 * P2 * P2, -P2 * P2, -P1, 1, 0],
      [0, -P2 * P1 * P1, -P1 * P1, P2, 1, 0], [0, P2 * P1 * P1, -P1 * P1, -P2, 1, 0]]


def bf16(x):
    u = struct.unpack("<I", struct.pack("<f", x))[0]
    assert u & 0xffff == 0, x
    return u >> 16


def fl(x):
    return "0x%08x" % struct.unpack("<I", struct.pack("<f", x))[0]


WST = 30720
DBASE = 3 * WST
DPL = 10240
NDB = 4
RAW0 = 2 * WST
RAW1 = DBASE + NDB * DPL
RAWE = RAW1 + 20480
PSCR = RAWE + 6144
LDS_TOTAL = PSCR + 4096
STG = DBASE + 2 * DPL
CSCR = STG + 36864

X_BYTES = 224 * 224 * 192
W_BYTES = 25 * 96 * 192
WT_BYTES = 40 * 18432
NG = 18

sSRDX, sSRDW, sSRDO, sSRDT, sSRDG, sSRDD = 12, 16, 20, 24, 28, 96 - 4 * 0
sSRDD = 52
sQ, sOO, sSy, sSx, sWave, sOdd, sVf, sUf = range(32, 40)
sK = [40, 41, 42]
sSeg = [43, 44, 45]


class Asm:
    def __init__(self):
        self.l = []

    def __call__(self, s):
        self.l.append("    " + s)

    def label(self, s):
        self.l.append(s + ":")

    def text(self):
        return "\n".join(self.l) + "\n"


def vr(b, n=4):
    return "v[%d:%d]" % (b, b + n - 1)


def srd(a, d, lo, nbytes):
    a("s_mov_b32 s%d, s%d" % (d, lo))
    a("s_and_b32 s%d, s%d, 0xffff" % (d + 1, lo + 1))
    a("s_mov_b32 s%d, 0x%x" % (d + 2, nbytes))
    a("s_mov_b32 s%d, 0x20000" % (d + 3))


def S4(d):
    return "s[%d:%d]" % (d, d + 3)


vSt = 27


def amp(a, name):
    if AMP == name:
        a("s_memrealtime s[92:93]")


def amp_spin(a):
    if not AMP:
        return
    a("s_waitcnt vmcnt(0)")
    amp(a, "end")
    a("s_memrealtime s[60:61]")
    a("s_waitcnt lgkmcnt(0)")
    a("s_sub_u32 s92, s92, s90")
    a("s_lshl_b32 s92, s92, %d" % AMPX)
    a("s_min_u32 s92, s92, 30000")
    a.label("L_amp")
    a("s_memrealtime s[62:63]")
    a("s_waitcnt lgkmcnt(0)")
    a("s_sub_u32 s62, s62, s60")
    a("s_cmp_lt_u32 s62, s92")
    a("s_cbranch_scc1 L_amp")


def stamp(a, idx):
    if not DIAG:
        return
    a("s_memrealtime s[60:61]")
    a("s_memtime s[62:63]")
    a("s_waitcnt lgkmcnt(0)")
    for i in range(4):
        a("v_writelane_b32 v%d, s%d, %d" % (vSt, 60 + i, idx * 4 + i))


def fine(a, i):
    if DIAG:
        a("s_memtime s[%d:%d]" % (66 + 2 * i, 67 + 2 * i))


def stamp_flush(a):
    if not DIAG:
        return
    a("s_waitcnt lgkmcnt(0)")
    for i in range(12):
        a("v_writelane_b32 v%d, s%d, %d" % (vSt, 66 + 2 * i, 48 + i))
    for i in range(4):
        a("v_writelane_b32 v%d, s%d, %d" % (vSt, 90 + i, i))
    if ODIAG:
        lab = "L_od%d" % len(a.l)
        a("s_cmp_lg_u32 s%d, %d" % (sWave, ODIAG))
        a("s_cbranch_scc1 %s" % lab)
        srd(a, sSRDD, 10, 256)
        a("v_mov_b32 v1, 0")
        a("v_readlane_b32 s60, v%d, 0" % vSt)
        a("s_not_b32 s61, s60")
        a("v_writelane_b32 v1, s61, 1")
        a("v_writelane_b32 v1, s60, 2")
        for i in (1, 2, 3):
            a("v_readlane_b32 s60, v%d, %d" % (vSt, 4 * i))
            a("s_nop 3")
            a("v_writelane_b32 v1, s60, %d" % (2 + i))
        a("v_readlane_b32 s62, v%d, 2" % vSt)
        for j, ln in enumerate((6, 51, 52, 53, 54, 55, 56, 57, 10, 14)):
            a("v_readlane_b32 s60, v%d, %d" % (vSt, ln))
            a("s_nop 3")
            a("s_sub_u32 s60, s60, s62")
            a("v_writelane_b32 v1, s60, %d" % (6 + j))
        a("v_lshlrev_b32 v2, 2, v0")
        a("v_cmp_gt_u32 vcc, 6, v0")
        a("s_mov_b64 exec, vcc")
        a("buffer_atomic_umax v1, v2, %s, 0 offen sc1" % S4(sSRDD))
        a("s_mov_b64 exec, 0xffc0")
        a("buffer_atomic_add v1, v2, %s, 0 offen sc1" % S4(sSRDD))
        a("s_mov_b64 exec, -1")
        a.label(lab)
    a("s_load_dwordx2 s[10:11], s[0:1], 32")
    a("s_waitcnt lgkmcnt(0)")
    srd(a, sSRDD, 10, 4 << 20)
    a("s_lshl_b32 s60, s2, 3")
    a("s_add_u32 s60, s60, s%d" % sWave)
    a("s_lshl_b32 s60, s60, 8")
    a("s_add_u32 s60, s60, 0x100000")
    a("v_lshlrev_b32 v1, 2, v0")
    a("buffer_store_dword v%d, v1, %s, s60 offen" % (vSt, S4(sSRDD)))


NITEM = 180


def producer_loads(a, R, sItem):
    a("s_mul_i32 s46, s%d, 3641" % sItem)
    a("s_lshr_b32 s46, s46, 16")
    a("s_mul_i32 s47, s46, 18")
    a("s_sub_u32 s47, s%d, s47" % sItem)
    a("s_cmp_ge_u32 s46, 5")
    a("s_cselect_b32 s48, 5, 0")
    a("s_cselect_b32 s50, 1, 5")
    a("s_cselect_b32 s51, 5, 1")
    a("s_sub_u32 s49, s46, s48")
    a("s_mul_i32 s50, s50, s49")
    a("s_mul_i32 s50, s50, 18432")
    a("s_mul_i32 s51, s51, 18432")
    a("s_mul_i32 s56, s47, 43")
    a("s_lshr_b32 s56, s56, 8")
    a("s_mul_i32 s57, s56, 6144 - 192")
    a("s_lshl_b32 s58, s47, 5")
    a("s_add_u32 s50, s50, s57")
    a("s_add_u32 s50, s50, s58")
    a("v_lshrrev_b32 v%d, 1, v0" % (R + 68))
    a("v_mul_u32_u24 v%d, 192, v%d" % (R + 68, R + 68))
    a("v_and_b32 v%d, 1, v0" % (R + 69))
    a("v_lshl_add_u32 v%d, v%d, 4, v%d" % (R + 68, R + 69, R + 68))


def producer_loads2(a, R):
    for b in range(5):
        a("buffer_load_dwordx4 %s, v%d, %s, s50 offen" % (vr(R + 8 * b + 4), R + 68, S4(sSRDW)))
        if b < 4:
            a("s_add_u32 s50, s50, s51")


def producer_rest(a, R, scr):
    RAWR = lambda b: R + 8 * b + 4
    U = R + 40
    EO = [[R + 48, R + 56], None]
    E1 = [R + 0, R + 1, R + 2, R + 3, R + 8, R + 9, R + 10, R + 11]
    O1 = [R + 16, R + 17, R + 18, R + 19, R + 24, R + 25, R + 26, R + 27]
    E = [[R + 48 + i for i in range(8)], E1]
    O = [[R + 56 + i for i in range(8)], O1]
    vl, vt, vw = R + 69, R + 70, R + 71
    a("s_lshl_b32 s48, s48, 2")
    a("s_add_u32 s48, s48, s49")
    a("s_mul_i32 s48, s48, 18432")
    a("s_lshl_b32 s58, s47, 10")
    a("s_add_u32 s48, s48, s58")
    cf = [[2 * LAM / N1 * P1 ** i for i in range(5)], [1 / N2 * P2 ** i for i in range(5)]]
    a("s_mov_b32 s47, 0xffff0000")
    a("v_lshlrev_b32 v%d, 4, v0" % vl)
    a("v_add_u32 v%d, %s, v%d" % (vw, scr, vl))
    a("v_lshrrev_b32 v%d, 4, v0" % U)
    a("v_and_b32 v%d, 15, v0" % vt)
    a("v_lshlrev_b32 v%d, 3, v%d" % (vt, vt))
    a("v_lshl_add_u32 v%d, v%d, 8, v%d" % (vt, U, vt))
    a("v_add_u32 v%d, %s, v%d" % (vt, scr, vt))
    for b in range(5):
        a("s_mov_b32 s50, %s" % fl(cf[0][b]))
        a("s_mov_b32 s51, %s" % fl(cf[1][b]))
        a("s_waitcnt vmcnt(%d)" % (4 - b))
        if PDIAG and R == 120 and b in (0, 4): fine(a, 5 + b // 4)
        for j in range(4):
            a("v_lshlrev_b32 v%d, 16, v%d" % (U + 2 * j, RAWR(b) + j))
            a("v_and_b32 v%d, s47, v%d" % (U + 2 * j + 1, RAWR(b) + j))
        for pi in range(2):
            d = (O if b & 1 else E)[pi]
            for i in range(8):
                a("%s v%d, s%d, v%d" % ("v_mul_f32" if b < 2 else "v_fmac_f32", d[i], 50 + pi, U + i))
    a("s_mov_b32 s50, %s" % fl(AL / BE))
    for pi in range(2):
        for i in range(8):
            a("v_add_f32 v%d, v%d, v%d" % (U + i, E[pi][i], O[pi][i]))
        for i in range(8):
            a("v_sub_f32 v%d, v%d, v%d" % (O[pi][i], E[pi][i], O[pi][i]))
        for j in range(4):
            a("v_cvt_pk_bf16_f32 v%d, v%d, v%d" % (RAWR(2 * pi) + j, U + 2 * j, U + 2 * j + 1))
        a("ds_write_b128 v%d, %s offset:%d" % (vw, vr(RAWR(2 * pi)), 2 * pi * 1024))
        if pi:
            for i in range(8):
                a("v_mul_f32 v%d, s50, v%d" % (O[pi][i], O[pi][i]))
        for j in range(4):
            a("v_cvt_pk_bf16_f32 v%d, v%d, v%d" % (RAWR(2 * pi + 1) + j, O[pi][2 * j], O[pi][2 * j + 1]))
        a("ds_write_b128 v%d, %s offset:%d" % (vw, vr(RAWR(2 * pi + 1)), (2 * pi + 1) * 1024))
        for k in (2 * pi, 2 * pi + 1):
            for h in range(2):
                a("ds_read_b64_tr_b16 %s, v%d offset:%d" % (vr(R + 48 + 4 * k + 2 * h, 2), vt, k * 1024 + h * 128))
    if PDIAG and R == 120: fine(a, 7)
    for k in range(4):
        a("s_waitcnt lgkmcnt(%d)" % (0 if DIAG else (8, 6, 2, 0)[k]))
        if PDIAG and R == 120 and k == 0: fine(a, 9)
        a("buffer_store_dwordx4 %s, v%d, %s, s48 offen sc1" % (vr(R + 48 + 4 * k), vl, S4(sSRDT)))
        if k < 3:
            a("s_add_u32 s48, s48, %d" % (5 * 18432))


vX, vXC = 1, 2
vWR = [[3, 4, 5], [6, 7, 8]]
vWT = [[9, 10, 11], [12, 13, 14]]
vSW = 15
vCs = 16
vCo = 17
vAt, vOne = 18, 19
vPref = 20
ACC = 28
ACCC = ACC + 72
POOL0 = ACCC + 8
NPOOL = (256 - POOL0) // 4


class Frag:
    def __init__(self, key, reads, valid, release):
        self.key, self.reads, self.valid, self.release = key, reads, valid, release
        self.first = self.last = self.reg = None
        self.issued = 0


def acc(e, t, r):
    return ACC + e * 36 + (t * 3 + r) * 4


def build_stream(mh):
    groups = []
    for k in range(NG):
        e = k & 1
        slot = k % 3
        hi = 1 if slot == 2 else 0
        so = (slot - 2 * hi) * WST
        rel = k if k < NG - 3 else None
        if k < 6:
            wf = [[Frag(("w", k, a_, t), [("ds_read_b64_tr_b16 %%s, v%d offset:%d" % (vWR[hi][t], so + a_ * 6144 + h * 768), 2 * h, 2) for h in range(2)], k - 1, rel)
                   for t in range(3)] for a_ in range(5)]
        else:
            wf = [[Frag(("w", k, a_, t), [("ds_read_b128 %%s, v%d offset:%d" % (vWT[hi][t], so + a_ * 6144), 0, 4)], k - 1, rel)
                   for t in range(3)] for a_ in range(5)]
        xrel = k if k <= NG - 3 else None
        do = (k % NDB) * DPL
        X = [Frag(("x", k, s), [("ds_read_b128 %%s, v%d offset:%d" % (vX, do + s * 512), 0, 4)], k - 1, xrel) for s in range(7)]
        lo = [0, 1, 2] if (k // 2 + k) % 2 == 0 else [0, 1]
        cen = lo if mh == 0 else [x for x in range(5) if x not in lo]
        T = []
        for t in range(3):
            L = [(acc(e, t, r), wf[a_][t], X[r + a_]) for r in range(3) for a_ in range(5)]
            if t == 0:
                C = [(ACCC + 4 * e, wf[a_][0], Frag(("c", k, a_), [("ds_read_b128 %%s, v%d offset:%d" % (vXC, do + a_ * 512), 0, 4)], k - 1, xrel)) for a_ in cen]
                L = L[:10] + C + L[10:]
            T.append(L)
        groups.append(T)
    M, starts = [], []
    for k in range(NG - 2):
        starts.append(len(M))
        for t in range(3):
            M += groups[k][t]
    starts.append(len(M))
    for t in range(3):
        M += groups[NG - 2][t] + groups[NG - 1][t]
    return M, starts


def schedule(mh):
    M, starts = build_stream(mh)
    N = len(M)
    bpos = {k: starts[k] + BOFF for k in range(NG - 2)}
    bpos[0] = starts[0] + BOFF0
    bpos[NG - 2] = starts[NG - 2] + 3
    bpos[-1] = -1
    frags = []
    for i, (ac, w, x) in enumerate(M):
        for f in (w, x):
            if f.first is None:
                f.first = i
                frags.append(f)
            f.last = i
    for f in frags:
        f.dead = f.first - MARGIN
        if f.release is not None:
            f.dead = min(f.dead, bpos[f.release] - MARGIN)
    pend = sorted(frags, key=lambda f: (f.dead, f.first))
    free = list(range(NPOOL))
    freeat = {}
    for f in frags:
        freeat.setdefault(f.last, []).append(f)
    uses = {}
    for i, (ac, w, x) in enumerate(M):
        uses.setdefault(ac, []).append(i)

    tasks = []
    pairs = [(acc(0, t, r), acc(1, t, r), t, r) for t in range(3) for r in range(3)] + [(ACCC, ACCC + 4, 0, 9)]
    kk = AL / (2 * LAM)
    for bd, (cm, c0, c1) in ((starts[6], (None, LAM / P1, -2 * LAM / P1)), (starts[12], (kk, kk * BE / AL, kk * (AL / BE - BE / AL)))):
        tl = []
        for s0, s1, t, r in pairs:
            lastu = max(u for u in uses[s0] + uses[s1] if u < bd)
            nextu = min(u for u in uses[s0] + uses[s1] if u >= bd)
            if cm:
                l0 = max(u for u in uses[s0] if u < bd)
                tl.append((l0 + 8, nextu - 3, ["v_mul_f32 v%d, %s, v%d" % (s0 + i, fl(cm), s0 + i) for i in range(4)]))
            ops = ["v_fmac_f32 v%d, %s, v%d" % (s0 + i, fl(c0), s1 + i) for i in range(4)]
            ops += ["v_fmamk_f32 v%d, v%d, %s, v%d" % (s1 + i, s1 + i, fl(c1), s0 + i) for i in range(4)]
            tl.append((lastu + 8, nextu - 3, ops))
        tl.sort(key=lambda z: z[0])
        for e_, l_, ops in tl:
            tasks += [(e_, l_, o, None) for o in ops]
    tl = []
    for s0, s1, t, r in pairs:
        lastu = max(uses[s0] + uses[s1])
        ops = [("v_fmac_f32 v%d, %s, v%d" % (s0 + i, fl(BE / AL), s1 + i), None) for i in range(4)]
        ops += [("v_mul_f32 v%d, %s, v%d" % (s1 + i, fl(-2 * P2 * BE / AL), s1 + i), None) for i in range(4)]
        ops += [("v_fmac_f32 v%d, %s, v%d" % (s1 + i, fl(P2), s0 + i), None) for i in range(4)]
        if r == 9:
            if mh == 1:
                ops += [("ds_write_b128 v%d, %s" % (vCs, vr(s0)), ("E", 0)), ("ds_write_b128 v%d, %s offset:1024" % (vCs, vr(s1)), ("E", 0))]
        else:
            for e, s in ((0, s0), (1, s1)):
                ops += [("v_cvt_pk_bf16_f32 v%d, v%d, v%d" % (s, s, s + 1), None), ("v_cvt_pk_bf16_f32 v%d, v%d, v%d" % (s + 1, s + 2, s + 3), None),
                        ("ds_write_b64 v%d, %s offset:%d" % (vSW, vr(s, 2), t * 12288 + r * 1024 + e * 512), ("E", t))]
        tl.append((lastu + 8, ops, t))
    tl.sort(key=lambda z: z[0])
    for idx, (e_, ops, t) in enumerate(tl):
        tasks += [(e_, None, o, k) for o, k in ops]
        if t < 2 and all(z[2] != t for z in tl[idx + 1:]):
            tasks.append((e_, None, "@E", ("BAR", t)))

    gap2bar = {v: k for k, v in bpos.items() if k >= 0}
    out, q = [], []
    stats = dict(wait=0, minslack=10 ** 9)

    def wait_for(pred, now):
        last = -1
        for j, e in enumerate(q):
            if pred(e):
                last = j
        if last < 0:
            return
        if now > 12:
            stats["minslack"] = min(stats["minslack"], now - q[last][0])
        for j, e in enumerate(q):
            if e[0] <= now - WAITAGE:
                last = max(last, j)
        n = min(len(q) - 1 - last, 15)
        out.append("s_waitcnt lgkmcnt(%d)" % n)
        stats["wait"] += 1
        del q[:len(q) - n]

    def try_issue(gap, urgent):
        for f in pend:
            if bpos[f.valid] > gap:
                continue
            if f.key[0] in "xc" and f.first - gap > XLOOK:
                continue
            if urgent is not None and f.dead - gap > urgent:
                return False
            if f.reg is None:
                if not free:
                    return False
                f.reg = POOL0 + 4 * free.pop(0)
            fmt, ro, n = f.reads[f.issued]
            out.append(fmt % vr(f.reg + ro, n))
            q.append((gap, f, f.release))
            f.issued += 1
            if f.issued == len(f.reads):
                pend.remove(f)
            return True
        return False

    ebar = [None]

    def try_task(gap):
        if not tasks or tasks[0][0] > gap:
            return False
        e_, l_, o, k = tasks[0]
        if k and k[0] == "BAR":
            tasks.pop(0)
            ebar[0] = (gap, k[1])
            return try_task(gap)
        assert l_ is None or gap <= l_, ("task late", gap, tasks[0])
        tasks.pop(0)
        out.append(o)
        if k:
            q.append((gap, None, k))
        return True

    while pend and pend[0].dead < 0:
        assert try_issue(-1, None)
    seen = set()
    for i, (ac, w, x) in enumerate(M):
        for f in (w, x):
            assert f.issued == len(f.reads), (i, f.key)
        wait_for(lambda e: e[1] is w or e[1] is x, i)
        c = vr(ac) if ac in seen else "0"
        seen.add(ac)
        out.append("v_mfma_f32_16x16x32_bf16 %s, %s, %s, %s" % (vr(ac), vr(w.reg), vr(x.reg), c))
        for f in freeat.get(i, []):
            free.append((f.reg - POOL0) // 4)
        if i == ATOM_AT:
            out.append("@ATOM")
            continue
        if i in gap2bar:
            k = gap2bar[i]
            assert not any(f.release == k for f in pend), k
            wait_for(lambda e: e[2] == k, i)
            out.append("s_barrier")
            out.append("@T%d" % k)
            continue
        if ebar[0] and i - ebar[0][0] >= 6:
            t = ebar[0][1]
            wait_for(lambda e: e[2] == ("E", t), i)
            out.append("s_barrier")
            out.append("@E%d" % t)
            ebar[0] = None
            continue
        n = 0
        busy = bool(tasks) and tasks[0][0] <= i
        inwin = any(0 < i - b <= (WIN if k >= 5 else WINR) and k != 1 and k < NG - 3 for b, k in gap2bar.items())
        if not inwin and try_issue(i, 12 if (busy and not WIN) else None):
            n += 1
            if try_issue(i, URG):
                n += 1
        while n < 2 and try_task(i):
            n += 1
    assert not pend
    tail = []
    if ebar[0]:
        tail += ["s_waitcnt lgkmcnt(0)", "s_barrier"]
    tail.append("s_nop 7")
    for e_, l_, o, k in tasks:
        if k and k[0] == "BAR":
            tail += ["s_waitcnt lgkmcnt(0)", "s_barrier"]
        else:
            tail.append(o)
    sys.stderr.write("mh=%d mfma=%d lines=%d waits=%d minslack=%d tail=%d\n" % (mh, N, len(out), stats["wait"], stats["minslack"], len(tail)))
    nb = sum(1 for o in out + tail if o == "s_barrier")
    assert nb == (NG - 1) + 2, nb
    return out, tail


hLo, hMid, hHi, hE, hDW, hEW, hRd, hTE, hM0, hM1 = range(1, 11)
hTR = [11, 12]
hOut = 13
wP = [16, 17, 18]
wPoll, wPo = 19, 20
hC = 21
hTm = 28
hAcc = 36
hResL = {"A": [52, 56, 60, 64, 188, 192, 196, 200], "B": [52, 56, 60, 64, 164, 168, 172, 176]}
NRES = 8
hXA = 68
hXE = 164
hPr = 184
sH, sRaw = 46, 47
sG0, sGa, sG4, sT0_, sTa_, sWv = 94, 95, 96, 97, 98, 99
LATE = None


class VQ:
    def __init__(self, a):
        self.a, self.q = a, []

    def add(self, tag):
        self.q.append(tag)

    def wait(self, pred):
        last = -1
        for j, t in enumerate(self.q):
            if pred(t):
                last = j
        if last < 0:
            return
        n = len(self.q) - 1 - last
        self.a("s_waitcnt vmcnt(%d)" % min(n, 63))
        del self.q[:last + 1]


def bi(a):
    if BI:
        a("s_barrier")


def srdT(a):
    a("s_and_b32 s%d, s%d, 0xffff" % (sSRDT + 1, sSRDT + 1))
    a("s_mov_b32 s%d, 0x%x" % (sSRDT + 2, WT_BYTES))
    a("s_mov_b32 s%d, 0x20000" % (sSRDT + 3))


def build_T(ph, which):
    ops = []
    ops.append("v_and_b32 v%d, 8, v0" % hC)
    ops.append("v_cmp_ne_u32 vcc, 0, v%d" % hC)
    for m in range(3):
        c = [bf16(BT[2 * ph + e][2 * m]) | bf16(BT[2 * ph + e][2 * m + 1]) << 16 for e in range(2)]
        ops.append("v_mov_b32 v%d, 0x%x" % (hC + m, c[0]))
        ops.append("v_mov_b32 v%d, 0x%x" % (hC + 3 + m, c[1]))
    for m in range(3):
        ops.append("v_cndmask_b32 v%d, v%d, v%d, vcc" % (hC + m, hC + m, hC + 3 + m))
    for w in which:
        src = (hM0, hM1)[w]
        for d in range(-3, 3):
            ops.append("v_cmp_eq_i32 vcc, %d, v%d" % (d, src))
            ops.append("s_nop 1")
            for j in range(4):
                m = d + j
                if 0 <= m <= 2:
                    r = hTm + 4 * w + j
                    first = (m == 0)
                    ops.append("v_cndmask_b32 v%d, %s, v%d, vcc" % (r, "0" if first else "v%d" % r, hC + m))
    ops.append("s_nop 1")
    return ops


def wdma(k):
    p = (k // 2) % 3
    G = []
    for t in range(5):
        g = []
        if t == 0:
            g.append("s_mul_i32 s59, s%d, 96" % sK[p])
            if k < 6:
                g.append("s_add_u32 s59, s59, s%d" % (sG4 if k & 1 else sG0))
            else:
                term = (0 if k < 12 else 2) + (k & 1)
                g.append("s_add_u32 s59, s59, s%d" % sT0_)
                if term:
                    g.append("s_add_u32 s59, s59, %d" % (term * 5 * 18432))
        g.append("s_add_u32 m0, s%d, %d" % (sWv, (k % 3) * WST + t * 6144))
        g.append("s_add_u32 s59, s59, s%d" % (sGa if k < 6 else sTa_) if t else "s_nop 0")
        for j in range(3):
            if k < 6:
                g.append(("buffer_load_dwordx4 v%d, %s, s59 offen offset:%d lds" % (wP[j], S4(sSRDW), j * 1024), ("w", k)))
            else:
                g.append(("buffer_load_dwordx4 v%d, %s, s59 offen offset:%d sc1 lds" % (wP[0], S4(sSRDT), j * 1024), ("w", k)))
        G.append(g)
    return G


def wsetup(a, sel):
    a("s_mul_i32 s%d, s%d, 3072" % (sWv, sWv))
    a("s_mov_b32 s57, 92160")
    a("s_cmp_eq_u32 s%d, 1" % sOdd)
    a("s_cselect_b32 s%d, 18432, s57" % sGa)
    a("s_cselect_b32 s%d, s57, 18432" % sG4)
    a("s_mul_i32 s%d, s%d, s%d" % (sG0, sGa, sVf))
    a("s_lshl2_add_u32 s%d, s%d, s%d" % (sG0, sG0, sWv))
    a("s_mul_i32 s%d, s%d, s56" % (sGa, sGa))
    a("s_lshl2_add_u32 s%d, s%d, s%d" % (sG4, sG4, sG0))
    a("s_mul_i32 s%d, s%d, 5" % (sT0_, sOdd))
    a("s_add_u32 s%d, s%d, s%d" % (sT0_, sT0_, sVf))
    a("s_mul_i32 s%d, s%d, %d" % (sT0_, sT0_, 4 * 18432))
    a("s_add_u32 s%d, s%d, s%d" % (sT0_, sT0_, sWv))
    a("s_mul_i32 s%d, s56, 18432" % sTa_)
    a("v_lshlrev_b32 v%d, 4, v0" % wP[0])
    a("v_and_b32 v%d, 32, v0" % wP[1])
    a("v_xor_b32 v%d, v%d, v%d" % (wP[1], wP[1], wP[0]))
    a("v_xor_b32 v%d, 32, v%d" % (wP[2], wP[0]))

def gen_help(a, role, a3):
    vq = VQ(a)
    XA = lambda p, row, m: hXA + ((p * 4 + row) * 2 + m) * 4
    XE = lambda p, m: hXE + (p * 2 + m) * 4
    rr = [0]
    lab = [0]

    def xload(p, count_only=False):
        for i in range(5):
            if not count_only:
                a("s_add_u32 m0, s%d, %d" % (sRaw, (RAW0 if p == 0 else RAW1) + i * 1024))
                if i == 0:
                    a("s_mov_b32 s58, s%d" % sK[p])
                elif i >= 2:
                    a("s_add_u32 s58, s58, s101")
                else:
                    a("s_nop 0")
                a("buffer_load_dwordx4 v%d, %s, s58 offen%s lds" % ((hLo, hMid, hMid, hMid, hHi)[i], S4(sSRDX), XFLAG))
            vq.add(("x", p))

    def xread(p):
        vq.wait(lambda t: t == ("x", p))
        for row in range(4):
            for m in range(2):
                for h in range(2):
                    a("ds_read_b64_tr_b16 %s, v%d offset:%d" % (vr(XA(p, row, m) + 2 * h, 2), hTR[h], row * 256 + m * 8))

    def eread(ps):
        if role == "A":
            for p in ps:
                for m in range(2):
                    for h in range(2):
                        a("ds_read_b64_tr_b16 %s, v%d offset:%d" % (vr(XE(p, m) + 2 * h, 2), hTE, p * 2048 + h * 1024 + m * 8))

    def emit(g):
        for o in g:
            if isinstance(o, tuple):
                a(o[0])
                vq.add(o[1])
            else:
                a(o)

    def merge(G, chunks):
        G, chunks = list(G), list(chunks)
        while G or chunks:
            if G:
                emit(G.pop(0))
            if chunks:
                emit(chunks.pop(0))

    def rows_ops(srcs, T, dsts):
        c1, c2, c3 = [], [], []
        regs = []
        for i, (A0, A1) in enumerate(srcs):
            for m, A in enumerate((A0, A1)):
                c1.append("v_mfma_f32_16x16x32_bf16 %s, %s, %s, 0" % (vr(hAcc + (2 * i + m) * 4), vr(A), vr(T)))
        c2.append("s_nop %d" % (7 if len(srcs) == 1 else 5))
        for i in range(len(srcs)):
            rr[0] = (rr[0] + 1) % NRES
            r = hResL[role][rr[0]]
            regs.append(r)
            for m in range(2):
                d = hAcc + (2 * i + m) * 4
                c2.append("v_cvt_pk_bf16_f32 v%d, v%d, v%d" % (r + 2 * m, d, d + 1))
                c2.append("v_cvt_pk_bf16_f32 v%d, v%d, v%d" % (r + 2 * m + 1, d + 2, d + 3))
        for r, (ad, off) in zip(regs, dsts):
            c3.append("ds_write_b128 v%d, %s offset:%d" % (ad, vr(r), off))
        return [c1, c2, c3]

    def rows(s, rws):
        p = s % 3
        return rows_ops([(XA(p, r, 0), XA(p, r, 1)) for r in rws], hTm, [(hDW, ((2 * s) % NDB) * DPL + r * 512) for r in rws])

    def extra_ops(s):
        p = s % 3
        return rows_ops([(XE(p, 0), XE(p, 1))], hTm + 4, [(hEW, ((2 * s) % NDB) * DPL)])

    def extra(s, chunks):
        if role != "A":
            return
        lab[0] += 1
        a("s_cmp_lg_u32 s%d, %d" % (sH, (s % 3) & 1))
        a("s_cbranch_scc1 L_ex%d" % lab[0])
        for c in chunks:
            emit(c)
        a.label("L_ex%d" % lab[0])

    def endint(k):
        if role == "B":
            vq.wait(lambda t: t == ("w", k + 1))
        a("s_waitcnt lgkmcnt(0)")
        a("s_barrier")

    which = (0, 1) if role == "A" else (0,)
    TB = lambda ph: [build_T(ph, which)]
    xload(0, True)
    def eload(p):
        if role != "A":
            return
        for i in range(2):
            a("s_mov_b32 m0, %d" % (RAWE + p * 2048 + i * 1024))
            if i == 0:
                a("s_mov_b32 s58, s%d" % sK[p])
            else:
                a("s_add_u32 s58, s58, s101")
            a("s_cmp_lg_u32 s%d, %d" % (sH, p & 1))
            a("s_cbranch_scc1 L_el%d" % (2 * p + i))
            a("buffer_load_dwordx4 v%d, %s, s58 offen%s lds" % (hE, S4(sSRDX), XFLAG))
            a.label("L_el%d" % (2 * p + i))

    def second():
        bi(a)
        xload(1)
        eload(1)
        eload(2)
        if role == "A":
            vq.add(("x", 1))
            vq.add(("x", 1))

    eload(0)
    if XORD == "A":
        second()
    a("s_branch L_late%s" % role)
    a.label("@SPLIT")
    a.label("L_late%s" % role)
    a.l += LATE.l
    merge([], TB(0))
    if role == "B":
        srd(a, sSRDG, 10, 256)
        srdT(a)
        if FLAGB:
            a("v_min_u32 v%d, %d, v0" % (wPo, NITEM // 4 - 1))
            a("v_lshlrev_b32 v%d, 2, v%d" % (wPo, wPo))
        else:
            a("v_and_b32 v%d, 3, v0" % wPo)
            a("v_lshlrev_b32 v%d, 6, v%d" % (wPo, wPo))
        a("s_and_b32 s%d, s%d, 1" % (sWv, sH))
        wsetup(a, None)
        srd(a, sSRDW, 6, W_BYTES)
    if XORD == "B":
        second()
    a("s_setprio 3")
    fine(a, 3)
    xread(0)
    eread([0])
    if XORD == "C":
        second()
    for h in range(2):
        a("v_add_u32 v%d, %d, v%d" % (hTR[h], RAW1 - RAW0, hTR[h]))
    fine(a, 4)
    a("s_waitcnt lgkmcnt(%d)" % (0 if DIAG else 8 + (4 if role == "A" else 0)))
    merge([], rows(0, (0, 1)))
    a("s_waitcnt lgkmcnt(%d)" % (0 if DIAG else 2))
    merge([], rows(0, (2, 3)))
    extra(0, extra_ops(0))
    if XORD == "D":
        second()
    fine(a, 5)
    endint(-1)
    amp(a, "B0")
    fine(a, 6)
    pendw = []
    pendx = None
    for k in range(0, NG - 1):
        G = wdma(k + 2) if (role == "B" and k + 2 < NG) else []
        work = []
        if k == PROBE:
            fine(a, 8)
        emit(pendw)
        pendw = []
        if pendx:
            extra(pendx[0], [pendx[1]])
            pendx = None
        if k == POLL_I and role == "B":
            a("buffer_load_dword v%d, v%d, %s, 0 offen sc1" % (wPoll, wPo, S4(sSRDG)))
            vq.add(("poll",))
        B = role == "B"
        if k == 0:
            merge(wdma(1) if B and NCW < 2 else [], [])
            G = []
            xread(1)
            eread([1, 2])
            a("s_waitcnt lgkmcnt(%d)" % (0 if DIAG else min(15, 8 + (8 if role == "A" else 0))))
            c0 = rows(1, (0, 1))
            merge([], c0[:2])
            a("s_waitcnt lgkmcnt(0)")
            c1 = rows(1, (2, 3))
            merge([], c1[:2])
            c = extra_ops(1)
            extra(1, c[:2])
            pendw = c0[2] + c1[2]
            pendx = (1, c[2])
        if k == 1:
            merge(wdma(2) if B else [], [])
            xload(2)
            G = []
        if k == 2:
            merge(wdma(3) if B else [], [])
            xread(2)
            emit(G.pop(0) if G else [])
            a("s_waitcnt lgkmcnt(0)")
            c0 = rows(2, (0, 1))
            work += c0[:2]
            pendw = c0[2]
        s = (k + 3) // 2
        if k >= 2 and s <= 8:
            if k % 2 == 1 and s % 3 == 0:
                work += TB(s // 3)
            c = rows(s, (0, 1) if k % 2 == 1 else (2, 3))
            work += c[:2]
            pendw = pendw + c[2]
        merge(G, work)
        if k >= 2 and k % 2 == 0 and s <= 8:
            c = extra_ops(s)
            extra(s, c[:2])
            pendx = (s, c[2])
        if k == PROBE:
            fine(a, 9)
        endint(k)
        amp(a, "T%d" % k)
        if k == PROBE:
            fine(a, 10)
        if k == POLL_I and role == "B":
            vq.wait(lambda t: t == ("poll",))
            a("v_cmp_eq_u32 vcc, 0x%x, v%d" % ((0x01010101 if FLAGB else NITEM // 4) + FORCE_FALLBACK, wPoll))
            a("s_cmp_eq_u64 vcc, exec")
            a("s_cbranch_scc0 L_slow")
            a.label("L_ready")
            fine(a, 7)
    if role == "A":
        a("s_branch L_xout")
        return
    a.label("L_xout")
    for t in range(3):
        a("s_barrier")
        for i in range(3):
            a("ds_read_b128 %s, v%d offset:%d" % (vr(hXA + (t * 3 + i) * 4), hRd, t * 12288 + i * 1024))
        for i in range(3):
            a("s_waitcnt lgkmcnt(%d)" % (0 if DIAG else 2 - i))
            a("buffer_store_dwordx4 %s, v%d, %s, s%d offen%s" % (vr(hXA + (t * 3 + i) * 4), hOut + i, S4(sSRDO), sSeg[t], STFLAG))
    amp_spin(a)
    fine(a, 11)
    if DIAG:
        a("s_waitcnt vmcnt(0)")
    stamp(a, 3)
    stamp_flush(a)
    a("s_endpgm")
    a = a3
    a.label("L_slow")
    a("s_mov_b32 s59, 0")
    a.label("L_slow1")
    a("buffer_load_dword v%d, v%d, %s, 0 offen sc1" % (wPoll, wPo, S4(sSRDG)))
    a("s_waitcnt vmcnt(0)")
    a("v_cmp_eq_u32 vcc, 0x%x, v%d" % ((0x01010101 if FLAGB else NITEM // 4) + FORCE_FALLBACK, wPoll))
    a("s_cmp_eq_u64 vcc, exec")
    a("s_cbranch_scc1 L_ready")
    a("s_sleep 16")
    a("s_add_u32 s59, s59, 1")
    a("s_cmp_lt_u32 s59, %d" % (3 if FORCE_FALLBACK else MAXPOLL))
    a("s_cbranch_scc1 L_slow1")
    a("s_add_u32 s100, s%d, %d" % (sRaw, RAW1))
    a("s_mov_b32 s59, 0")
    a.label("L_slow2")
    producer_loads(a, hPr, 59)
    a("s_waitcnt vmcnt(0)")
    producer_loads2(a, hPr)
    producer_rest(a, hPr, "s100")
    a("s_add_u32 s59, s59, 1")
    a("s_cmp_lt_u32 s59, %d" % NITEM)
    a("s_cbranch_scc1 L_slow2")
    a("s_waitcnt vmcnt(0)")
    a("s_branch L_ready")


def gen():
    a = Asm()
    a.l.append("; @launch grid=(256,1,1) block=(512,1,1) lds=%d" % LDS_TOTAL)
    a.l.append('.amdgcn_target "amdgcn-amd-amdhsa--gfx950"')
    a.l.append(".text")
    a.l.append(".globl %s_kernel" % NAME)
    a.l.append(".p2align 12")
    a.l.append(".p2align 8")
    a.l.append(".type %s_kernel,@function" % NAME)
    a.label("%s_kernel" % NAME)
    a("s_cmp_lt_u32 s2, 256")
    a("s_cbranch_scc1 L_go")
    a("s_endpgm")
    a.label("L_go")
    a("s_load_dwordx8 s[4:11], s[0:1], 0")
    a("s_load_dwordx2 s[%d:%d], s[0:1], 32" % (sSRDT, sSRDT + 1))
    a("v_lshrrev_b32 v1, 6, v0")
    a("s_nop 0")
    a("v_readfirstlane_b32 s%d, v1" % sWave)
    a("v_and_b32 v0, 63, v0")
    if AMP:
        a("s_memrealtime s[90:91]")
        a("s_memrealtime s[92:93]")
    if DIAG:
        a("v_mov_b32 v%d, 0" % vSt)
        a("s_memrealtime s[90:91]")
        a("s_memtime s[92:93]")
        for i in range(12):
            a("s_mov_b32 s%d, 0" % (66 + 2 * i))
    a("s_cmp_lg_u32 s%d, 2" % sWave)
    a("s_cbranch_scc1 L_n0")
    a("s_and_b32 s59, s2, 7")
    a("s_mul_i32 s59, s59, 23")
    a("s_lshr_b32 s58, s2, 3")
    a("s_add_u32 s59, s59, s58")
    a("s_cmp_ge_u32 s58, 23")
    a("s_cselect_b32 s59, 255, s59")
    a("s_cmp_lt_u32 s59, %d" % NITEM)
    a("s_cbranch_scc1 L_prod")
    bi(a)
    a("s_branch L_noprod0")
    a.label("L_prod")
    a("s_setprio 3")
    producer_loads(a, 120, 59)
    if PDIAG: fine(a, 3)
    a("s_waitcnt lgkmcnt(0)")
    srd(a, sSRDW, 6, W_BYTES)
    producer_loads2(a, 120)
    if PDIAG: fine(a, 4)
    a("s_branch L_prod2")
    a.label("L_n0")
    a("s_cmp_lt_u32 s%d, 4" % sWave)
    a("s_cbranch_scc1 L_c")
    a.label("L_h")

    def decode1(a):
        a("s_bfe_u32 s%d, s2, 0x20003" % sQ)
        a("s_lshr_b32 s%d, s%d, 1" % (sUf, sQ))
        a("s_and_b32 s%d, s%d, 1" % (sOdd, sQ))
        a("s_xor_b32 s%d, s%d, s%d" % (sVf, sOdd, sUf))
        a("s_lshl_b32 s56, s%d, 1" % sVf)
        a("s_sub_u32 s56, 1, s56")
        a("s_bitcmp1_b32 s2, 5")
        a("s_cselect_b32 s%d, 0, 128" % sK[0])
        a("s_cselect_b32 s%d, 64, 0" % sK[1])
        a("s_cselect_b32 s%d, 128, 64" % sK[2])

    def decode2(a):
        a("s_bfe_u32 s48, s2, 0x10005")
        a("s_bfe_u32 s49, s2, 0x10006")
        a("s_lshr_b32 s50, s2, 7")
        a("s_and_b32 s51, s2, 1")
        a("s_lshl1_add_u32 s50, s51, s50")
        a("s_bfe_u32 s51, s2, 0x20001")
        a("s_lshl_b32 s59, s%d, 3" % sQ)
        a("s_lshr_b32 s57, 0x0c1b0000, s59")
        a("s_and_b32 s57, s57, 0xff")
        a("s_lshr_b32 s58, 0x000c1b00, s59")
        a("s_and_b32 s58, s58, 0xff")
        a("s_mul_i32 s59, s51, 28")
        a("s_add_u32 s57, s57, s59")
        a("s_mul_i32 s59, s50, 28")
        a("s_add_u32 s58, s58, s59")
        a("s_lshl1_add_u32 s57, s57, s49")
        a("s_lshl1_add_u32 s58, s58, s48")
        a("s_mul_i32 s57, s57, 224")
        a("s_add_u32 s57, s57, s58")
        a("s_mul_i32 s%d, s57, 192" % sOO)
        a("s_mov_b32 s57, 86016")
        a("s_cmp_eq_u32 s%d, 1" % sOdd)
        a("s_cselect_b32 s%d, s57, 384" % sSx)
        a("s_cselect_b32 s%d, 384, s57" % sSy)
        a("s_cselect_b32 s46, s50, s51")
        a("s_cselect_b32 s47, s51, s50")
        a("s_mul_i32 s%d, s%d, s56" % (sSy, sSy))

    def decode3(a):
        a("s_lshl_b32 s57, s%d, 3" % sQ)
        for t, tab in enumerate((0x00804000, 0x40008040, 0x80400080)):
            a("s_lshr_b32 s58, 0x%08x, s57" % tab)
            a("s_and_b32 s%d, s58, 0xff" % sSeg[t])

    global LATE
    a("s_setprio %d" % HPRIO0)
    a("v_lshrrev_b32 v21, 4, v0")
    a("v_bfe_u32 v22, v0, 2, 2")
    a("v_and_b32 v23, 3, v0")
    a("v_bfrev_b32 v24, 2")
    decode1(a)
    decode2(a)
    a("s_mul_i32 s58, s%d, 3" % sVf)
    a("s_cmp_eq_u32 s46, s58")
    a("s_cselect_b32 s58, 2, 0")
    a("s_sub_u32 s%d, s%d, 4" % (sH, sWave))
    a("s_cmp_eq_u32 s%d, 0" % sH)
    a("s_cselect_b32 s58, s58, 0")
    a("v_cmp_gt_u32 vcc, s58, v21")
    a("v_mul_i32_i24 v25, s%d, v21" % sSy)
    a("v_mad_i32_i24 v25, v22, s%d, v25" % sSx)
    a("v_lshl_add_u32 v25, v23, 4, v25")
    a("s_lshl2_add_u32 s57, s%d, -2" % sH)
    a("s_mul_i32 s57, s57, s%d" % sSy)
    a("s_add_u32 s57, s57, s%d" % sOO)
    a("s_lshl1_add_u32 s57, s%d, s57" % sSx)
    a("v_add_u32 v26, s57, v25")
    a("v_cndmask_b32 v%d, v26, v24, vcc" % hMid)
    a("s_lshl_b32 s101, s%d, 2" % sSx)
    a("s_mul_i32 s59, s%d, 3" % sUf)
    a("s_cmp_eq_u32 s47, s59")
    a("s_cselect_b32 s57, 2, 0")
    a("s_cmp_eq_u32 s%d, 0" % sUf)
    a("s_cselect_b32 s58, s57, 0")
    a("s_cselect_b32 s57, 0, s57")
    a("s_sub_u32 s57, 4, s57")
    a("v_cmp_gt_u32 vcc, s58, v22")
    a("v_subrev_u32 v26, s101, v%d" % hMid)
    a("s_mul_i32 s%d, s%d, 5120" % (sRaw, sH))
    a("v_cndmask_b32 v%d, v26, v24, vcc" % hLo)
    a("v_cmp_le_u32 vcc, s57, v22")
    fine(a, 1)
    a("s_waitcnt lgkmcnt(0)")
    fine(a, 2)
    srd(a, sSRDX, 4, X_BYTES)
    a("v_cndmask_b32 v%d, v%d, v24, vcc" % (hHi, hMid))
    for i in range(5):
        a("s_add_u32 m0, s%d, %d" % (sRaw, RAW0 + i * 1024))
        if i == 0:
            a("s_mov_b32 s58, s%d" % sK[0])
        elif i >= 2:
            a("s_add_u32 s58, s58, s101")
        else:
            a("s_nop 0")
        a("buffer_load_dwordx4 v%d, %s, s58 offen%s lds" % ((hLo, hMid, hMid, hMid, hHi)[i], S4(sSRDX), XFLAG))
    a("s_sub_u32 s100, 1, s%d" % sUf)
    a("s_mul_i32 s100, s100, 6")
    a("s_cmp_ge_u32 s%d, 2" % sH)
    a("s_cbranch_scc1 L_hB")

    l = LATE = Asm()
    srd(l, sSRDO, 8, X_BYTES)
    decode3(l)
    l("v_and_b32 v24, 15, v0")
    l("v_and_b32 v25, 7, v0")
    l("v_lshlrev_b32 v26, 2, v21")
    l("v_sub_u32 v%d, v26, v25" % hM0)
    l("v_lshrrev_b32 v26, 1, v25")
    l("v_and_b32 v26, 2, v26")
    l("v_xor_b32 v26, v26, v21")
    l("v_lshlrev_b32 v26, 4, v26")
    l("v_lshl_add_u32 v26, v25, 6, v26")
    l("v_lshrrev_b32 v28, 3, v24")
    l("v_mul_u32_u24 v28, %d, v28" % DPL)
    l("s_lshl_b32 s58, s%d, 11" % sH)
    l("s_add_u32 s58, s58, %d" % DBASE)
    l("v_add3_u32 v%d, v26, v28, s58" % hDW)
    l("v_bfe_u32 v29, v0, 1, 2")
    l("v_and_b32 v30, 1, v0")
    l("v_cmp_eq_u32 vcc, v29, v21")
    l("v_sub_u32 v26, 0, v30")
    l("v_add_u32 v30, s100, v30")
    l("v_cndmask_b32 v%d, 64, v26, vcc" % hM1)
    l("s_lshr_b32 s58, s100, 1")
    l("s_and_b32 s58, s58, 2")
    l("v_xor_b32 v26, s58, v21")
    l("v_lshlrev_b32 v26, 4, v26")
    l("v_lshl_add_u32 v26, v30, 6, v26")
    l("v_lshl_add_u32 v26, v29, 9, v26")
    l("s_mov_b32 s58, %d" % (DBASE + 16 * 512))
    l("v_add3_u32 v%d, v26, v28, s58" % hEW)
    l("v_lshlrev_b32 v24, 4, v24")
    l("s_add_u32 s58, s%d, %d" % (sRaw, RAW0))
    for h in range(2):
        l("v_lshl_add_u32 v26, v21, 1, %d" % h)
        l("v_min_u32 v26, 4, v26")
        l("v_lshl_add_u32 v26, v26, 10, v24")
        l("v_add_u32 v%d, s58, v26" % hTR[h])
    l("v_lshl_add_u32 v26, v21, 8, v24")
    l("v_add_u32 v%d, %d, v26" % (hTE, RAWE))
    l("v_lshrrev_b32 v24, 2, v0")
    l("v_bfe_u32 v26, v0, 3, 2")
    l("v_xor_b32 v26, v26, v23")
    l("v_lshlrev_b32 v26, 4, v26")
    l("v_lshl_add_u32 v26, v24, 6, v26")
    l("s_mul_i32 s58, s%d, 3072" % sH)
    l("s_add_u32 s58, s58, %d" % STG)
    l("v_add_u32 v%d, s58, v26" % hRd)
    l("v_and_b32 v26, 7, v24")
    l("v_lshrrev_b32 v24, 3, v24")
    l("v_lshl_add_u32 v26, v26, 1, v24")
    l("v_mul_i32_i24 v26, s%d, v26" % sSx)
    l("v_lshl_add_u32 v26, v23, 4, v26")
    l("s_mul_i32 s58, s%d, 3" % sH)
    l("s_mul_i32 s58, s58, s%d" % sSy)
    l("s_add_u32 s58, s58, s%d" % sOO)
    l("v_add_u32 v%d, s58, v26" % hOut)
    for i in range(2):
        l("v_add_u32 v%d, s%d, v%d" % (hOut + i + 1, sSy, hOut + i))

    slow = Asm()
    far = Asm()
    a("s_lshl1_add_u32 s57, s100, -2")
    a("s_mul_i32 s57, s57, s%d" % sSx)
    a("s_mul_i32 s58, s%d, 14" % sSy)
    a("s_add_u32 s57, s57, s58")
    a("s_add_u32 s57, s57, s%d" % sOO)
    a("v_add_u32 v%d, s57, v25" % hE)
    hA = Asm()
    gen_help(hA, "A", slow)
    cut = hA.l.index("@SPLIT:")
    a.l += hA.l[:cut]
    far.l += hA.l[cut + 1:]
    a.label("L_hB")
    hB = Asm()
    gen_help(hB, "B", slow)
    cut = hB.l.index("@SPLIT:")
    a.l += hB.l[:cut]
    far.l += hB.l[cut + 1:]

    a.label("L_c")
    a("s_cmp_lg_u32 s%d, 0" % sWave)
    a("s_cbranch_scc1 L_cw")
    a("s_getpc_b64 s[56:57]")
    a.label("L_pc")
    a("s_add_u32 s56, s56, %s_kernel + 2048 - L_pc" % NAME)
    a("s_addc_u32 s57, s57, 0")
    a("s_lshr_b32 s58, s2, 3")
    a("s_mul_i32 s59, s58, 43")
    a("s_lshr_b32 s59, s59, 8")
    a("s_mul_i32 s59, s59, 6")
    a("s_sub_u32 s58, s58, s59")
    a("s_lshl_b32 s58, s58, 13")
    a("v_lshlrev_b32 v2, 7, v0")
    a("v_add_u32 v2, s58, v2")
    a("global_load_dword v%d, v2, s[56:57]" % vPref)
    bi(a)
    a("s_branch L_noprod0")
    a.label("L_cw")
    a("s_lshr_b32 s%d, s%d, 1" % (sWv, sWave))
    decode1(a)
    wsetup(a, None)
    a("s_setprio %d" % WPRIO0)
    a("s_waitcnt lgkmcnt(0)")
    srd(a, sSRDW, 6, W_BYTES)
    for k in range(NCW):
        for g in wdma(k):
            for o in g:
                a(o[0] if isinstance(o, tuple) else o)
        if k == 0:
            fine(a, 0)
            a("s_setprio %d" % WPRIO1)
            bi(a)
    fine(a, 1)
    a("s_branch L_noprod0")
    a.label("L_prod2")
    srdT(a)
    producer_rest(a, 120, "%d" % PSCR)
    fine(a, 1)
    bi(a)
    a("v_bfrev_b32 v%d, 2" % vAt)
    if FLAGB:
        a("v_writelane_b32 v%d, s59, 0" % vAt)
    else:
        a("s_and_b32 s58, s59, 3")
        a("s_lshl_b32 s58, s58, 6")
        a("v_writelane_b32 v%d, s58, 0" % vAt)
    a("s_branch L_noprod")
    a.l += far.l
    w3 = slow

    a.label("L_noprod0")
    a("v_bfrev_b32 v%d, 2" % vAt)
    a.label("L_noprod")
    a("s_waitcnt lgkmcnt(0)")
    srd(a, sSRDO, 8, X_BYTES)
    srd(a, sSRDG, 10, 256)
    a("v_mov_b32 v%d, 1" % vOne)
    decode1(a)
    decode2(a)
    decode3(a)
    a("s_and_b32 s50, s%d, 1" % sWave)
    a("s_lshr_b32 s51, s%d, 1" % sWave)
    T = 108
    vn, vg, vq, vc, t0, t1, t2 = range(T, T + 7)
    a("v_and_b32 v%d, 15, v0" % vn)
    a("v_lshrrev_b32 v%d, 4, v0" % vg)
    a("v_lshrrev_b32 v%d, 2, v%d" % (vq, vn))
    a("v_and_b32 v%d, 3, v0" % vc)
    a("v_lshl_add_u32 v%d, v%d, 3, v%d" % (t0, vg, vq))
    a("v_mul_u32_u24 v%d, 192, v%d" % (t0, t0))
    a("v_lshl_add_u32 v%d, v%d, 3, v%d" % (t0, vc, t0))
    a("v_and_b32 v%d, 1, v%d" % (t1, vg))
    a("v_xor_b32 v%d, s51, v%d" % (t1, t1))
    a("v_lshl_add_u32 v%d, v%d, 5, v%d" % (t0, t1, t0))
    a("v_lshlrev_b32 v%d, 4, v0" % t1)
    a("s_lshl_b32 s58, s51, 10")
    a("v_add_u32 v%d, s58, v%d" % (t1, t1))
    for t in range(3):
        a("v_add_u32 v%d, s%d, v%d" % (vWR[0][t], sSeg[t], t0))
        a("v_add_u32 v%d, %d, v%d" % (vWR[1][t], 2 * WST, vWR[0][t]))
        a("s_lshl_b32 s58, s%d, 5" % sSeg[t])
        a("v_add_u32 v%d, s58, v%d" % (vWT[0][t], t1))
        a("v_add_u32 v%d, %d, v%d" % (vWT[1][t], 2 * WST, vWT[0][t]))
    a("v_lshrrev_b32 v%d, 1, v%d" % (t0, vn))
    a("v_and_b32 v%d, 2, v%d" % (t0, t0))
    a("v_xor_b32 v%d, v%d, v%d" % (t0, t0, vg))
    a("v_lshlrev_b32 v%d, 4, v%d" % (t0, t0))
    a("v_and_b32 v%d, 7, v%d" % (t1, vn))
    a("v_lshl_add_u32 v%d, v%d, 6, v%d" % (t0, t1, t0))
    a("v_lshrrev_b32 v%d, 3, v%d" % (t2, vn))
    a("v_mul_u32_u24 v%d, 3072, v%d" % (t2, t2))
    a("s_mul_i32 s58, s50, 1536")
    a("s_add_u32 s58, s58, %d" % DBASE)
    a("v_add3_u32 v%d, v%d, v%d, s58" % (vX, t0, t2))
    a("v_lshrrev_b32 v%d, 1, v%d" % (t0, vg))
    a("s_lshl_b32 s58, s51, 1")
    a("v_add_u32 v%d, s58, v%d" % (t0, t0))
    a("v_bfe_u32 v%d, v%d, 1, 2" % (T + 7, vn))
    a("v_xor_b32 v%d, v%d, v%d" % (t0, t0, T + 7))
    a("v_lshlrev_b32 v%d, 4, v%d" % (t0, t0))
    a("v_lshl_add_u32 v%d, v%d, 6, v%d" % (t0, t1, t0))
    a("v_lshl_add_u32 v%d, v%d, 1, v%d" % (t0, t2, t0))
    a("v_and_b32 v%d, 1, v%d" % (t1, vg))
    a("v_lshl_add_u32 v%d, v%d, 3, v%d" % (t0, t1, t0))
    a("s_mul_i32 s58, s50, 3072")
    a("s_add_u32 s58, s58, %d" % STG)
    a("v_add_u32 v%d, s58, v%d" % (vSW, t0))
    a("s_sub_u32 s59, 1, s%d" % sUf)
    a("s_mul_i32 s59, s59, 6")
    a("v_and_b32 v%d, 1, v0" % t0)
    a("v_add_u32 v%d, s59, v%d" % (t0, t0))
    a("v_lshrrev_b32 v%d, 1, v%d" % (t1, t0))
    a("v_and_b32 v%d, 2, v%d" % (t1, t1))
    a("v_xor_b32 v%d, v%d, v%d" % (t1, t1, vg))
    a("v_lshlrev_b32 v%d, 4, v%d" % (t1, t1))
    a("v_lshl_add_u32 v%d, v%d, 6, v%d" % (t1, t0, t1))
    a("v_lshl_add_u32 v%d, v%d, 9, v%d" % (t1, T + 7, t1))
    a("v_add_u32 v%d, %d, v%d" % (vXC, DBASE + 12 * 512, t1))
    a("v_add_u32 v%d, 12, v%d" % (t1, T + 7))
    a("v_mul_i32_i24 v%d, s%d, v%d" % (t1, sSy, t1))
    a("v_lshlrev_b32 v%d, 1, v%d" % (t0, t0))
    a("v_mad_i32_i24 v%d, v%d, s%d, v%d" % (t1, t0, sSx, t1))
    a("v_lshl_add_u32 v%d, v%d, 3, v%d" % (t1, vg, t1))
    a("s_lshl_b32 s58, s51, 5")
    a("s_add_u32 s58, s58, s%d" % sOO)
    a("s_cmp_eq_u32 s%d, 3" % sQ)
    a("s_cselect_b32 s59, 0, 8")
    a("v_cmp_gt_u32 vcc, s59, v%d" % vn)
    a("v_add_u32 v%d, s58, v%d" % (t1, t1))
    a("v_bfrev_b32 v%d, 2" % t0)
    a("v_cndmask_b32 v%d, v%d, v%d, vcc" % (vCo, t0, t1))
    a("s_lshl_b32 s58, s51, 11")
    a("s_add_u32 s58, s58, %d" % CSCR)
    a("v_lshlrev_b32 v%d, 4, v0" % t0)
    a("v_add_u32 v%d, s58, v%d" % (vCs, t0))
    a("s_add_u32 s59, s%d, s%d" % (sSeg[0], sSx))
    a("s_setprio 2")

    def atom():
        a("s_waitcnt vmcnt(0)")
        a("%s v%d, v%d, %s, 0 offen sc1" % ("buffer_store_byte" if FLAGB else "buffer_atomic_add", vOne, vAt, S4(sSRDG)))
        fine(a, 2)

    a("s_cmp_eq_u32 s50, 1")
    a("s_cbranch_scc1 L_c1")
    marks = {"@T0": 3, "@T1": 4, "@T3": 5, "@T5": 6, "@T7": 7, "@T11": 8, "@T16": 9, "@E0": 10, "@E1": 11}
    if MARKS:
        marks = {"@T%d" % k: i for i, k in enumerate(MARKS)}
    if PDIAG:
        marks = {"@T1": 10, "@T3": 11}
    for mh in range(2):
        lines, tail = schedule(mh)
        if mh == 1:
            a.label("L_c1")
        if mh == 1:
            a("s_waitcnt vmcnt(%d)" % (15 * (NCW - 1)))
        elif ATOM_AT < 0:
            atom()
        a("s_barrier")
        stamp(a, 1)
        first = True
        for t in lines:
            if t == "@ATOM":
                if mh == 0:
                    atom()
            elif t.startswith("@"):
                if t in marks:
                    fine(a, marks[t])
            else:
                if t == "s_barrier" and first:
                    first = False
                    if mh == 1:
                        a("s_waitcnt vmcnt(0)")
                a(t)
        stamp(a, 2)
        for t in tail:
            a(t)
        R = POOL0
        if mh == 0:
            a("ds_read_b128 %s, v%d" % (vr(R), vCs))
            a("ds_read_b128 %s, v%d offset:1024" % (vr(R + 4), vCs))
            a("s_waitcnt lgkmcnt(%d)" % (0 if DIAG else 2))
        else:
            a("s_waitcnt lgkmcnt(0)")
        a("s_barrier")
        if mh == 0:
            a("s_waitcnt lgkmcnt(0)")
            for i in range(8):
                a("v_add_f32 v%d, v%d, v%d" % (ACCC + i, ACCC + i, R + i))
            for e in range(2):
                s = ACCC + 4 * e
                a("v_cvt_pk_bf16_f32 v%d, v%d, v%d" % (s, s, s + 1))
                a("v_cvt_pk_bf16_f32 v%d, v%d, v%d" % (s + 1, s + 2, s + 3))
                a("buffer_store_dwordx2 %s, v%d, %s, s%d offen%s" % (vr(s, 2), vCo, S4(sSRDO), 59 if e else sSeg[0], STFLAG))
        if DIAG:
            a("s_waitcnt vmcnt(0)")
        stamp(a, 3)
        stamp_flush(a)
        a("s_endpgm")
    a.l += w3.l
    a.l.append(".fill (%d" % CODE_END + " - (. - %s_kernel)) / 4, 4, 0xbf800000" % NAME)
    a("s_endpgm")

    a.l.append('.section .rodata,"a"')
    a.l.append(".p2align 6")
    a.l.append(".amdhsa_kernel %s_kernel" % NAME)
    a.l.append("  .amdhsa_next_free_vgpr 256")
    a.l.append("  .amdhsa_next_free_sgpr 102")
    a.l.append("  .amdhsa_accum_offset 256")
    a.l.append("  .amdhsa_group_segment_fixed_size 0")
    a.l.append("  .amdhsa_kernarg_size 40")
    a.l.append("  .amdhsa_user_sgpr_count 2")
    a.l.append("  .amdhsa_user_sgpr_kernarg_segment_ptr 1")
    a.l.append("  .amdhsa_system_sgpr_workgroup_id_x 1")
    a.l.append("  .amdhsa_float_denorm_mode_32 3")
    a.l.append(".end_amdhsa_kernel")
    return a.text()


if __name__ == "__main__":
    if "-diag" in sys.argv:
        DIAG = True
        sys.argv.remove("-diag")
    for kv in [x for x in sys.argv[1:] if "=" in x]:
        k, v = kv.split("=", 1)
        globals()[k] = eval(v)
        sys.argv.remove(kv)
    out = sys.argv[1] if len(sys.argv) > 1 else "cdna_kernels/%s.s" % NAME
    open(out, "w").write(gen())
    print("wrote", out)
```

```python
import sys, struct

NAME = "standalone__dilated_atrous__vision"

DIAG = False
STFLAG = " sc1"
XFLAG = " nt"
BOFF = 14
WIN = 10
WINR = 6
URG = 8
BOFF0 = 20
PK = False
VPRIO = 0
MARGIN = 7
XLOOK = 30
WAITAGE = 9
ATOM_AT = -1
POLL_I = 3
MAXPOLL = 2000
HPRIO = 0
FORCE_FALLBACK = False
PROBE = -99
PDIAG = False
GO_AT = 58
LCNT = 2
AMP = None
AMPX = 2
ODIAG = 0
NCW = 2
QUOTA = {0: 3, 1: 0}
Q1A = 2
X2_I = 2
X2Q = 5
MARKS = None
NPRE = 3
FLAGB = False
BI = False
XORD = "D"
WPRIO1 = 1
WPRIO0 = 3
HPRIO0 = 3
CODE_END = 2048 + 3 * 8192 * 2 + 256

P1, P2 = 1.5, 0.625
LAM = (P1 * P2) ** 2
KAP = P1 * P1 + P2 * P2
N1 = 2 * P1 * P1 * (P1 * P1 - P2 * P2)
N2 = 2 * P2 * P2 * (P2 * P2 - P1 * P1)
AL, BE = (1 + P1 / P2) / 2, (1 - P1 / P2) / 2
BT = [[LAM, 0, -KAP, 0, 1, 0], [0, LAM, 0, -KAP, 0, 1],
      [0, -P1 * P2 * P2, -P2 * P2, P1, 1, 0], [0, P1 * P2 * P2, -P2 * P2, -P1, 1, 0],
      [0, -P2 * P1 * P1, -P1 * P1, P2, 1, 0], [0, P2 * P1 * P1, -P1 * P1, -P2, 1, 0]]


def bf16(x):
    u = struct.unpack("<I", struct.pack("<f", x))[0]
    assert u & 0xffff == 0, x
    return u >> 16


def fl(x):
    return "0x%08x" % struct.unpack("<I", struct.pack("<f", x))[0]


WST = 30720
DBASE = 3 * WST
DPL = 10240
NDB = 4
RAW0 = 2 * WST
RAW1 = DBASE + NDB * DPL
RAWE = RAW1 + 20480
PSCR = RAWE + 6144
LDS_TOTAL = PSCR + 4096
STG = DBASE + 2 * DPL
CSCR = STG + 36864

X_BYTES = 224 * 224 * 192
W_BYTES = 25 * 96 * 192
WT_BYTES = 40 * 18432
NG = 18
STEPS = [(0, 0), (0, 1), (0, 2), (1, 0), (1, 1), (1, 2), (2, 0), (2, 1), (2, 2)]


def TS():
    return LAM if STEPS[-1][0] == 0 else 1.0


def PH(k):
    return STEPS[k // 2][0]


def PC(k):
    return STEPS[k // 2][1]


sSRDX, sSRDW, sSRDO, sSRDT, sSRDG, sSRDD = 12, 16, 20, 24, 28, 96 - 4 * 0
sSRDD = 52
sQ, sOO, sSy, sSx, sWave, sOdd, sVf, sUf = range(32, 40)
sK = [40, 41, 42]
sSeg = [43, 44, 45]


class Asm:
    def __init__(self):
        self.l = []

    def __call__(self, s):
        self.l.append("    " + s)

    def label(self, s):
        self.l.append(s + ":")

    def text(self):
        return "\n".join(self.l) + "\n"


def vr(b, n=4):
    return "v[%d:%d]" % (b, b + n - 1)


def srd(a, d, lo, nbytes):
    a("s_mov_b32 s%d, s%d" % (d, lo))
    a("s_and_b32 s%d, s%d, 0xffff" % (d + 1, lo + 1))
    a("s_mov_b32 s%d, 0x%x" % (d + 2, nbytes))
    a("s_mov_b32 s%d, 0x20000" % (d + 3))


def S4(d):
    return "s[%d:%d]" % (d, d + 3)


vSt = 27


def amp(a, name):
    if AMP == name:
        a("s_memrealtime s[92:93]")


def amp_spin(a):
    if not AMP:
        return
    a("s_waitcnt vmcnt(0)")
    amp(a, "end")
    a("s_memrealtime s[60:61]")
    a("s_waitcnt lgkmcnt(0)")
    a("s_sub_u32 s92, s92, s90")
    a("s_lshl_b32 s92, s92, %d" % AMPX)
    a("s_min_u32 s92, s92, 30000")
    a.label("L_amp")
    a("s_memrealtime s[62:63]")
    a("s_waitcnt lgkmcnt(0)")
    a("s_sub_u32 s62, s62, s60")
    a("s_cmp_lt_u32 s62, s92")
    a("s_cbranch_scc1 L_amp")


def stamp(a, idx):
    if not DIAG:
        return
    a("s_memrealtime s[60:61]")
    a("s_memtime s[62:63]")
    a("s_waitcnt lgkmcnt(0)")
    for i in range(4):
        a("v_writelane_b32 v%d, s%d, %d" % (vSt, 60 + i, idx * 4 + i))


def fine(a, i):
    if DIAG:
        a("s_memtime s[%d:%d]" % (66 + 2 * i, 67 + 2 * i))


def stamp_flush(a):
    if not DIAG:
        return
    a("s_waitcnt lgkmcnt(0)")
    for i in range(12):
        a("v_writelane_b32 v%d, s%d, %d" % (vSt, 66 + 2 * i, 48 + i))
    for i in range(4):
        a("v_writelane_b32 v%d, s%d, %d" % (vSt, 90 + i, i))
    if ODIAG:
        lab = "L_od%d" % len(a.l)
        a("s_cmp_lg_u32 s%d, %d" % (sWave, ODIAG))
        a("s_cbranch_scc1 %s" % lab)
        srd(a, sSRDD, 10, 256)
        a("v_mov_b32 v1, 0")
        a("v_readlane_b32 s60, v%d, 0" % vSt)
        a("s_not_b32 s61, s60")
        a("v_writelane_b32 v1, s61, 1")
        a("v_writelane_b32 v1, s60, 2")
        for i in (1, 2, 3):
            a("v_readlane_b32 s60, v%d, %d" % (vSt, 4 * i))
            a("s_nop 3")
            a("v_writelane_b32 v1, s60, %d" % (2 + i))
        a("v_readlane_b32 s62, v%d, 2" % vSt)
        for j, ln in enumerate((6, 51, 52, 53, 54, 55, 56, 57, 10, 14)):
            a("v_readlane_b32 s60, v%d, %d" % (vSt, ln))
            a("s_nop 3")
            a("s_sub_u32 s60, s60, s62")
            a("v_writelane_b32 v1, s60, %d" % (6 + j))
        a("v_lshlrev_b32 v2, 2, v0")
        a("v_cmp_gt_u32 vcc, 6, v0")
        a("s_mov_b64 exec, vcc")
        a("buffer_atomic_umax v1, v2, %s, 0 offen sc1" % S4(sSRDD))
        a("s_mov_b64 exec, 0xffc0")
        a("buffer_atomic_add v1, v2, %s, 0 offen sc1" % S4(sSRDD))
        a("s_mov_b64 exec, -1")
        a.label(lab)
    a("s_load_dwordx2 s[10:11], s[0:1], 32")
    a("s_waitcnt lgkmcnt(0)")
    srd(a, sSRDD, 10, 4 << 20)
    a("s_lshl_b32 s60, s2, 3")
    a("s_add_u32 s60, s60, s%d" % sWave)
    a("s_lshl_b32 s60, s60, 8")
    a("s_add_u32 s60, s60, 0x100000")
    a("v_lshlrev_b32 v1, 2, v0")
    a("buffer_store_dword v%d, v1, %s, s60 offen" % (vSt, S4(sSRDD)))


NITEM = 180


def producer_loads(a, R, sItem):
    a("s_mul_i32 s46, s%d, 3641" % sItem)
    a("s_lshr_b32 s46, s46, 16")
    a("s_mul_i32 s47, s46, 18")
    a("s_sub_u32 s47, s%d, s47" % sItem)
    a("s_cmp_ge_u32 s46, 5")
    a("s_cselect_b32 s48, 5, 0")
    a("s_cselect_b32 s50, 1, 5")
    a("s_cselect_b32 s51, 5, 1")
    a("s_sub_u32 s49, s46, s48")
    a("s_mul_i32 s50, s50, s49")
    a("s_mul_i32 s50, s50, 18432")
    a("s_mul_i32 s51, s51, 18432")
    a("s_mul_i32 s56, s47, 43")
    a("s_lshr_b32 s56, s56, 8")
    a("s_mul_i32 s57, s56, 6144 - 192")
    a("s_lshl_b32 s58, s47, 5")
    a("s_add_u32 s50, s50, s57")
    a("s_add_u32 s50, s50, s58")
    a("v_lshrrev_b32 v%d, 1, v0" % (R + 68))
    a("v_mul_u32_u24 v%d, 192, v%d" % (R + 68, R + 68))
    a("v_and_b32 v%d, 1, v0" % (R + 69))
    a("v_lshl_add_u32 v%d, v%d, 4, v%d" % (R + 68, R + 69, R + 68))


def producer_loads2(a, R):
    for b in range(5):
        a("buffer_load_dwordx4 %s, v%d, %s, s50 offen" % (vr(R + 8 * b + 4), R + 68, S4(sSRDW)))
        if b < 4:
            a("s_add_u32 s50, s50, s51")


def producer_rest(a, R, scr):
    RAWR = lambda b: R + 8 * b + 4
    U = R + 40
    EO = [[R + 48, R + 56], None]
    E1 = [R + 0, R + 1, R + 2, R + 3, R + 8, R + 9, R + 10, R + 11]
    O1 = [R + 16, R + 17, R + 18, R + 19, R + 24, R + 25, R + 26, R + 27]
    E = [[R + 48 + i for i in range(8)], E1]
    O = [[R + 56 + i for i in range(8)], O1]
    vl, vt, vw = R + 69, R + 70, R + 71
    a("s_lshl_b32 s48, s48, 2")
    a("s_add_u32 s48, s48, s49")
    a("s_mul_i32 s48, s48, 18432")
    a("s_lshl_b32 s58, s47, 10")
    a("s_add_u32 s48, s48, s58")
    cf = [[2 * LAM / N1 * P1 ** i for i in range(5)], [TS() / N2 * P2 ** i for i in range(5)]]
    a("s_mov_b32 s47, 0xffff0000")
    a("v_lshlrev_b32 v%d, 4, v0" % vl)
    a("v_add_u32 v%d, %s, v%d" % (vw, scr, vl))
    a("v_lshrrev_b32 v%d, 4, v0" % U)
    a("v_and_b32 v%d, 15, v0" % vt)
    a("v_lshlrev_b32 v%d, 3, v%d" % (vt, vt))
    a("v_lshl_add_u32 v%d, v%d, 8, v%d" % (vt, U, vt))
    a("v_add_u32 v%d, %s, v%d" % (vt, scr, vt))
    for b in range(5):
        a("s_mov_b32 s50, %s" % fl(cf[0][b]))
        a("s_mov_b32 s51, %s" % fl(cf[1][b]))
        a("s_waitcnt vmcnt(%d)" % (4 - b))
        if PDIAG and R == 120 and b in (0, 4): fine(a, 5 + b // 4)
        for j in range(4):
            a("v_lshlrev_b32 v%d, 16, v%d" % (U + 2 * j, RAWR(b) + j))
            a("v_and_b32 v%d, s47, v%d" % (U + 2 * j + 1, RAWR(b) + j))
        for pi in range(2):
            d = (O if b & 1 else E)[pi]
            for i in range(8):
                a("%s v%d, s%d, v%d" % ("v_mul_f32" if b < 2 else "v_fmac_f32", d[i], 50 + pi, U + i))
    a("s_mov_b32 s50, %s" % fl(AL / BE))
    for pi in range(2):
        for i in range(8):
            a("v_add_f32 v%d, v%d, v%d" % (U + i, E[pi][i], O[pi][i]))
        for i in range(8):
            a("v_sub_f32 v%d, v%d, v%d" % (O[pi][i], E[pi][i], O[pi][i]))
        for j in range(4):
            a("v_cvt_pk_bf16_f32 v%d, v%d, v%d" % (RAWR(2 * pi) + j, U + 2 * j, U + 2 * j + 1))
        a("ds_write_b128 v%d, %s offset:%d" % (vw, vr(RAWR(2 * pi)), 2 * pi * 1024))
        if pi:
            for i in range(8):
                a("v_mul_f32 v%d, s50, v%d" % (O[pi][i], O[pi][i]))
        for j in range(4):
            a("v_cvt_pk_bf16_f32 v%d, v%d, v%d" % (RAWR(2 * pi + 1) + j, O[pi][2 * j], O[pi][2 * j + 1]))
        a("ds_write_b128 v%d, %s offset:%d" % (vw, vr(RAWR(2 * pi + 1)), (2 * pi + 1) * 1024))
        for k in (2 * pi, 2 * pi + 1):
            for h in range(2):
                a("ds_read_b64_tr_b16 %s, v%d offset:%d" % (vr(R + 48 + 4 * k + 2 * h, 2), vt, k * 1024 + h * 128))
    if PDIAG and R == 120: fine(a, 7)
    for k in range(4):
        a("s_waitcnt lgkmcnt(%d)" % (0 if DIAG else (8, 6, 2, 0)[k]))
        if PDIAG and R == 120 and k == 0: fine(a, 9)
        a("buffer_store_dwordx4 %s, v%d, %s, s48 offen sc1" % (vr(R + 48 + 4 * k), vl, S4(sSRDT)))
        if k < 3:
            a("s_add_u32 s48, s48, %d" % (5 * 18432))


vX, vXC = 1, 2
vWR = [[3, 4, 5], [6, 7, 8]]
vWT = [[9, 10, 11], [12, 13, 14]]
vSW = 15
vCs = 16
vCo = 17
vAt, vOne = 18, 19
vPref = 20
vRet = 21
ACC = 28
ACCC = ACC + 72
POOL0 = ACCC + 8
NPOOL = (256 - POOL0) // 4


class Frag:
    def __init__(self, key, reads, valid, release):
        self.key, self.reads, self.valid, self.release = key, reads, valid, release
        self.first = self.last = self.reg = None
        self.issued = 0


def acc(e, t, r):
    return ACC + e * 36 + (t * 3 + r) * 4


def build_stream(mh):
    groups = []
    for k in range(NG):
        e = k & 1
        slot = k % 3
        hi = 1 if slot == 2 else 0
        so = (slot - 2 * hi) * WST
        rel = k if k < NG - 3 else None
        if PH(k) == 0:
            wf = [[Frag(("w", k, a_, t), [("ds_read_b64_tr_b16 %%s, v%d offset:%d" % (vWR[hi][t], so + a_ * 6144 + h * 768), 2 * h, 2) for h in range(2)], k - 1, rel)
                   for t in range(3)] for a_ in range(5)]
        else:
            wf = [[Frag(("w", k, a_, t), [("ds_read_b128 %%s, v%d offset:%d" % (vWT[hi][t], so + a_ * 6144), 0, 4)], k - 1, rel)
                   for t in range(3)] for a_ in range(5)]
        xrel = k if k <= NG - 3 else None
        do = (k % NDB) * DPL
        X = [Frag(("x", k, s), [("ds_read_b128 %%s, v%d offset:%d" % (vX, do + s * 512), 0, 4)], k - 1, xrel) for s in range(7)]
        lo = [0, 1, 2] if (k // 2 + k) % 2 == 0 else [0, 1]
        cen = lo if mh == 0 else [x for x in range(5) if x not in lo]
        T = []
        for t in range(3):
            L = [(acc(e, t, r), wf[a_][t], X[r + a_]) for r in range(3) for a_ in range(5)]
            if t == 0:
                C = [(ACCC + 4 * e, wf[a_][0], Frag(("c", k, a_), [("ds_read_b128 %%s, v%d offset:%d" % (vXC, do + a_ * 512), 0, 4)], k - 1, xrel)) for a_ in cen]
                L = L[:10] + C + L[10:]
            T.append(L)
        groups.append(T)
    M, starts = [], []
    for k in range(NG - 2):
        starts.append(len(M))
        for t in range(3):
            M += groups[k][t]
    starts.append(len(M))
    for t in range(3):
        M += groups[NG - 2][t] + groups[NG - 1][t]
    return M, starts


def schedule(mh):
    M, starts = build_stream(mh)
    N = len(M)
    bpos = {k: starts[k] + BOFF for k in range(NG - 2)}
    bpos[0] = starts[0] + BOFF0
    bpos[NG - 2] = starts[NG - 2] + 3
    bpos[-1] = -1
    frags = []
    for i, (ac, w, x) in enumerate(M):
        for f in (w, x):
            if f.first is None:
                f.first = i
                frags.append(f)
            f.last = i
    for f in frags:
        f.dead = f.first - MARGIN
        if f.release is not None:
            f.dead = min(f.dead, bpos[f.release] - MARGIN)
    pend = sorted(frags, key=lambda f: (f.dead, f.first))
    free = list(range(NPOOL))
    freeat = {}
    for f in frags:
        freeat.setdefault(f.last, []).append(f)
    uses = {}
    for i, (ac, w, x) in enumerate(M):
        uses.setdefault(ac, []).append(i)

    tasks = []
    chains = []
    pairs = [(acc(0, t, r), acc(1, t, r), t, r) for t in range(3) for r in range(3)] + [(ACCC, ACCC + 4, 0, 9)]
    kk = AL / 2 * TS() / LAM
    for ks in range(1, 9):
        tr = (STEPS[ks - 1][0], STEPS[ks][0])
        if tr[0] == tr[1]:
            continue
        bd = starts[2 * ks]
        tl = []
        for s0, s1, t, r in pairs:
            lastu = max(u for u in uses[s0] + uses[s1] if u < bd)
            next0 = min(u for u in uses[s0] if u >= bd)
            next1 = min(u for u in uses[s1] if u >= bd)
            I4 = range(4)
            if tr == (0, 1):
                o0 = ["v_fmac_f32 v%d, %s, v%d" % (s0 + i, fl(LAM / P1), s1 + i) for i in I4]
                o0 += ["v_fmamk_f32 v%d, v%d, %s, v%d" % (s1 + i, s1 + i, fl(-2 * LAM / P1), s0 + i) for i in I4]
            elif tr == (1, 2):
                l0 = max(u for u in uses[s0] if u < bd)
                tl.append((l0 + 8, next0 - 3, ["v_mul_f32 v%d, %s, v%d" % (s0 + i, fl(kk), s0 + i) for i in I4]))
                o0 = ["v_fmac_f32 v%d, %s, v%d" % (s0 + i, fl(kk * BE / AL), s1 + i) for i in I4]
                o0 += ["v_fmamk_f32 v%d, v%d, %s, v%d" % (s1 + i, s1 + i, fl(kk * (AL / BE - BE / AL)), s0 + i) for i in I4]
            else:
                assert tr == (2, 0)
                o0 = ["v_fmac_f32 v%d, %s, v%d" % (s0 + i, fl(BE / AL), s1 + i) for i in I4]
                o0 += ["v_fmamk_f32 v%d, v%d, %s, v%d" % (s1 + i, s1 + i, fl(-2 * BE / AL), s0 + i) for i in I4]
                tl.append((lastu + 8, next1 - 3, ["v_mul_f32 v%d, %s, v%d" % (s1 + i, fl(P2 / LAM), s1 + i) for i in I4]))
            tl.append((lastu + 8, next0 - 3, o0))
        chains += [[e_, l_, list(ops)] for e_, l_, ops in tl]
    chains.sort(key=lambda z: (z[1], z[0]))
    tl = []
    for s0, s1, t, r in pairs:
      for e, s in ((0, s0), (1, s1)):
        if STEPS[-1][0] == 0:
            lastu = max(uses[s])
            ops = [("v_mul_f32 v%d, %s, v%d" % (s + i, fl(1 / LAM), s + i), None) for i in range(4)] if e == 0 else []
        else:
            lastu = max(uses[s0] + uses[s1])
            if e == 0:
                ops = [("v_fmac_f32 v%d, %s, v%d" % (s0 + i, fl(BE / AL), s1 + i), None) for i in range(4)]
                ops += [("v_mul_f32 v%d, %s, v%d" % (s1 + i, fl(-2 * P2 * BE / AL), s1 + i), None) for i in range(4)]
                ops += [("v_fmac_f32 v%d, %s, v%d" % (s1 + i, fl(P2), s0 + i), None) for i in range(4)]
            else:
                ops = []
        if r == 9:
            if mh == 1:
                ops += [("ds_write_b128 v%d, %s offset:%d" % (vCs, vr(s), e * 1024), ("E", 0))]
        else:
            ops += [("v_cvt_pk_bf16_f32 v%d, v%d, v%d" % (s, s, s + 1), None), ("v_cvt_pk_bf16_f32 v%d, v%d, v%d" % (s + 1, s + 2, s + 3), None),
                    ("ds_write_b64 v%d, %s offset:%d" % (vSW, vr(s, 2), t * 12288 + r * 1024 + e * 512), ("E", t))]
        tl.append((lastu + 8, ops, t))
    tl.sort(key=lambda z: z[0])
    for idx, (e_, ops, t) in enumerate(tl):
        tasks += [(e_, None, o, k) for o, k in ops]
        if t < 2 and all(z[2] != t for z in tl[idx + 1:]):
            tasks.append((e_, None, "@E", ("BAR", t)))

    gap2bar = {v: k for k, v in bpos.items() if k >= 0}
    out, q = [], []
    stats = dict(wait=0, minslack=10 ** 9)

    def wait_for(pred, now):
        last = -1
        for j, e in enumerate(q):
            if pred(e):
                last = j
        if last < 0:
            return
        if now > 12:
            stats["minslack"] = min(stats["minslack"], now - q[last][0])
        for j, e in enumerate(q):
            if e[0] <= now - WAITAGE:
                last = max(last, j)
        n = min(len(q) - 1 - last, 15)
        out.append("s_waitcnt lgkmcnt(%d)" % n)
        stats["wait"] += 1
        del q[:len(q) - n]

    def try_issue(gap, urgent):
        for f in pend:
            if bpos[f.valid] > gap:
                continue
            if f.key[0] in "xc" and f.first - gap > XLOOK:
                continue
            if urgent is not None and f.dead - gap > urgent:
                return False
            if f.reg is None:
                if not free:
                    return False
                f.reg = POOL0 + 4 * free.pop(0)
            fmt, ro, n = f.reads[f.issued]
            out.append(fmt % vr(f.reg + ro, n))
            q.append((gap, f, f.release))
            f.issued += 1
            if f.issued == len(f.reads):
                pend.remove(f)
            return True
        return False

    ebar = [None]

    def chain_urgent(gap):
        need = 0
        for c in chains:
            need += len(c[2])
            if c[0] <= gap and need > 2 * (c[1] - gap) - 2:
                return True
            if c[1] - gap > 40:
                break
        return False

    def try_task(gap):
        for c in chains:
            if c[0] <= gap:
                assert gap <= c[1], ("chain late", gap, c)
                out.append(c[2].pop(0))
                if not c[2]:
                    chains.remove(c)
                return True
        if not tasks or tasks[0][0] > gap:
            return False
        e_, l_, o, k = tasks[0]
        if k and k[0] == "BAR":
            tasks.pop(0)
            ebar[0] = (gap, k[1])
            return try_task(gap)
        assert l_ is None or gap <= l_, ("task late", gap, tasks[0])
        tasks.pop(0)
        out.append(o)
        if k:
            q.append((gap, None, k))
        return True

    while pend and pend[0].dead < 0:
        assert try_issue(-1, None)
    seen = set()
    for i, (ac, w, x) in enumerate(M):
        for f in (w, x):
            assert f.issued == len(f.reads), (i, f.key)
        wait_for(lambda e: e[1] is w or e[1] is x, i)
        c = vr(ac) if ac in seen else "0"
        seen.add(ac)
        out.append("v_mfma_f32_16x16x32_bf16 %s, %s, %s, %s" % (vr(ac), vr(w.reg), vr(x.reg), c))
        for f in freeat.get(i, []):
            free.append((f.reg - POOL0) // 4)
        if i == ATOM_AT:
            out.append("@ATOM")
            continue
        if i == GO_AT:
            out.append("@GO")
            continue
        if i in gap2bar:
            k = gap2bar[i]
            assert not any(f.release == k for f in pend), k
            wait_for(lambda e: e[2] == k, i)
            out.append("s_barrier")
            out.append("@T%d" % k)
            continue
        if ebar[0] and i - ebar[0][0] >= 6:
            t = ebar[0][1]
            wait_for(lambda e: e[2] == ("E", t), i)
            out.append("s_barrier")
            out.append("@E%d" % t)
            ebar[0] = None
            continue
        n = 0
        busy = bool(tasks) and tasks[0][0] <= i
        inwin = any(0 < i - b <= (WIN if PH(k + 1) else WINR) and 2 <= k < NG - 3 for b, k in gap2bar.items())
        if not inwin and try_issue(i, 12 if (busy and not WIN) else None):
            n += 1
            if try_issue(i, URG):
                n += 1
        while n < (4 if chain_urgent(i) else 2) and try_task(i):
            n += 1
    assert not pend and not chains
    tail = []
    if ebar[0]:
        tail += ["s_waitcnt lgkmcnt(0)", "s_barrier"]
    tail.append("s_nop 7")
    for e_, l_, o, k in tasks:
        if k and k[0] == "BAR":
            tail += ["s_waitcnt lgkmcnt(0)", "s_barrier"]
        else:
            tail.append(o)
    sys.stderr.write("mh=%d mfma=%d lines=%d waits=%d minslack=%d tail=%d\n" % (mh, N, len(out), stats["wait"], stats["minslack"], len(tail)))
    nb = sum(1 for o in out + tail if o == "s_barrier")
    assert nb == (NG - 1) + 2, nb
    return out, tail


hLo, hMid, hHi, hE, hDW, hEW, hRd, hTE, hM0, hM1 = range(1, 11)
hTR = [11, 12]
hOut = 13
wP = [16, 17, 18]
wPoll, wPo = 19, 20
hC = 21
hTm = 28
hAcc = 36
hResL = {"A": [52, 56, 60, 64, 188, 192, 196, 200], "B": [52, 56, 60, 64, 164, 168, 172, 176]}
NRES = 8
hXA = 68
hXE = 164
hPr = 184
sH, sRaw = 46, 47
sG0, sGa, sG4, sT0_, sTa_, sWv = 94, 95, 96, 97, 98, 99
LATE = None


class VQ:
    def __init__(self, a):
        self.a, self.q = a, []

    def add(self, tag):
        self.q.append(tag)

    def wait(self, pred):
        last = -1
        for j, t in enumerate(self.q):
            if pred(t):
                last = j
        if last < 0:
            return
        n = len(self.q) - 1 - last
        self.a("s_waitcnt vmcnt(%d)" % min(n, 63))
        del self.q[:last + 1]


def bi(a):
    if BI:
        a("s_barrier")


def srdT(a):
    a("s_and_b32 s%d, s%d, 0xffff" % (sSRDT + 1, sSRDT + 1))
    a("s_mov_b32 s%d, 0x%x" % (sSRDT + 2, WT_BYTES))
    a("s_mov_b32 s%d, 0x20000" % (sSRDT + 3))


def build_T(ph, which):
    ops = []
    ops.append("v_and_b32 v%d, 8, v0" % hC)
    ops.append("v_cmp_ne_u32 vcc, 0, v%d" % hC)
    for m in range(3):
        c = [bf16(BT[2 * ph + e][2 * m]) | bf16(BT[2 * ph + e][2 * m + 1]) << 16 for e in range(2)]
        ops.append("v_mov_b32 v%d, 0x%x" % (hC + m, c[0]))
        ops.append("v_mov_b32 v%d, 0x%x" % (hC + 3 + m, c[1]))
    for m in range(3):
        ops.append("v_cndmask_b32 v%d, v%d, v%d, vcc" % (hC + m, hC + m, hC + 3 + m))
    for w in which:
        src = (hM0, hM1)[w]
        for d in range(-3, 3):
            ops.append("v_cmp_eq_i32 vcc, %d, v%d" % (d, src))
            ops.append("s_nop 1")
            for j in range(4):
                m = d + j
                if 0 <= m <= 2:
                    r = hTm + 4 * w + j
                    first = (m == 0)
                    ops.append("v_cndmask_b32 v%d, %s, v%d, vcc" % (r, "0" if first else "v%d" % r, hC + m))
    ops.append("s_nop 1")
    return ops


def wdma(k):
    p = PC(k)
    G = []
    for t in range(5):
        g = []
        if t == 0:
            g.append("s_mul_i32 s59, s%d, 96" % sK[p])
            if PH(k) == 0:
                g.append("s_add_u32 s59, s59, s%d" % (sG4 if k & 1 else sG0))
            else:
                term = 2 * (PH(k) - 1) + (k & 1)
                g.append("s_add_u32 s59, s59, s%d" % sT0_)
                if term:
                    g.append("s_add_u32 s59, s59, %d" % (term * 5 * 18432))
        g.append("s_add_u32 m0, s%d, %d" % (sWv, (k % 3) * WST + t * 6144))
        g.append("s_add_u32 s59, s59, s%d" % (sGa if PH(k) == 0 else sTa_) if t else "s_nop 0")
        for j in range(3):
            if PH(k) == 0:
                g.append(("buffer_load_dwordx4 v%d, %s, s59 offen offset:%d lds" % (wP[j], S4(sSRDW), j * 1024), ("w", k)))
            else:
                g.append(("buffer_load_dwordx4 v%d, %s, s59 offen offset:%d sc1 lds" % (wP[0], S4(sSRDT), j * 1024), ("w", k)))
        G.append(g)
    return G


def wsetup(a, sel):
    a("s_mul_i32 s%d, s%d, 3072" % (sWv, sWv))
    a("s_mov_b32 s57, 92160")
    a("s_cmp_eq_u32 s%d, 1" % sOdd)
    a("s_cselect_b32 s%d, 18432, s57" % sGa)
    a("s_cselect_b32 s%d, s57, 18432" % sG4)
    a("s_mul_i32 s%d, s%d, s%d" % (sG0, sGa, sVf))
    a("s_lshl2_add_u32 s%d, s%d, s%d" % (sG0, sG0, sWv))
    a("s_mul_i32 s%d, s%d, s56" % (sGa, sGa))
    a("s_lshl2_add_u32 s%d, s%d, s%d" % (sG4, sG4, sG0))
    a("s_mul_i32 s%d, s%d, 5" % (sT0_, sOdd))
    a("s_add_u32 s%d, s%d, s%d" % (sT0_, sT0_, sVf))
    a("s_mul_i32 s%d, s%d, %d" % (sT0_, sT0_, 4 * 18432))
    a("s_add_u32 s%d, s%d, s%d" % (sT0_, sT0_, sWv))
    a("s_mul_i32 s%d, s56, 18432" % sTa_)
    a("v_lshlrev_b32 v%d, 4, v0" % wP[0])
    a("v_and_b32 v%d, 32, v0" % wP[1])
    a("v_xor_b32 v%d, v%d, v%d" % (wP[1], wP[1], wP[0]))
    a("v_xor_b32 v%d, 32, v%d" % (wP[2], wP[0]))

def gen_help(a, role, a3):
    vq = VQ(a)
    XA = lambda p, row, m: hXA + ((p * 4 + row) * 2 + m) * 4
    XE = lambda p, m: hXE + (p * 2 + m) * 4
    rr = [0]
    lab = [0]

    def xload(p, count_only=False):
        for i in range(5):
            if not count_only:
                a("s_add_u32 m0, s%d, %d" % (sRaw, (RAW0 if p == 0 else RAW1) + i * 1024))
                if i == 0:
                    a("s_mov_b32 s58, s%d" % sK[p])
                elif i >= 2:
                    a("s_add_u32 s58, s58, s101")
                else:
                    a("s_nop 0")
                a("buffer_load_dwordx4 v%d, %s, s58 offen%s lds" % ((hLo, hMid, hMid, hMid, hHi)[i], S4(sSRDX), XFLAG))
            vq.add(("x", p))

    def xread(p):
        vq.wait(lambda t: t == ("x", p))
        for row in range(4):
            for m in range(2):
                for h in range(2):
                    a("ds_read_b64_tr_b16 %s, v%d offset:%d" % (vr(XA(p, row, m) + 2 * h, 2), hTR[h], row * 256 + m * 8))

    def eread(ps):
        if role == "A":
            for p in ps:
                for m in range(2):
                    for h in range(2):
                        a("ds_read_b64_tr_b16 %s, v%d offset:%d" % (vr(XE(p, m) + 2 * h, 2), hTE, p * 2048 + h * 1024 + m * 8))

    def emit(g):
        for o in g:
            if isinstance(o, tuple):
                a(o[0])
                vq.add(o[1])
            else:
                a(o)

    def merge(G, chunks):
        G, chunks = list(G), list(chunks)
        while G or chunks:
            if G:
                emit(G.pop(0))
            if chunks:
                emit(chunks.pop(0))

    def rows_ops(srcs, T, dsts):
        c1, c2, c3 = [], [], []
        regs = []
        for i, (A0, A1) in enumerate(srcs):
            for m, A in enumerate((A0, A1)):
                c1.append("v_mfma_f32_16x16x32_bf16 %s, %s, %s, 0" % (vr(hAcc + (2 * i + m) * 4), vr(A), vr(T)))
        c2.append("s_nop %d" % (7 if len(srcs) == 1 else 5))
        for i in range(len(srcs)):
            rr[0] = (rr[0] + 1) % NRES
            r = hResL[role][rr[0]]
            regs.append(r)
            for m in range(2):
                d = hAcc + (2 * i + m) * 4
                c2.append("v_cvt_pk_bf16_f32 v%d, v%d, v%d" % (r + 2 * m, d, d + 1))
                c2.append("v_cvt_pk_bf16_f32 v%d, v%d, v%d" % (r + 2 * m + 1, d + 2, d + 3))
        for r, (ad, off) in zip(regs, dsts):
            c3.append("ds_write_b128 v%d, %s offset:%d" % (ad, vr(r), off))
        return [c1, c2, c3]

    def rows(s, rws):
        p = STEPS[s][1]
        return rows_ops([(XA(p, r, 0), XA(p, r, 1)) for r in rws], hTm, [(hDW, ((2 * s) % NDB) * DPL + r * 512) for r in rws])

    def extra_ops(s):
        p = STEPS[s][1]
        return rows_ops([(XE(p, 0), XE(p, 1))], hTm + 4, [(hEW, ((2 * s) % NDB) * DPL)])

    def extra(s, chunks):
        if role != "A":
            return
        lab[0] += 1
        a("s_cmp_lg_u32 s%d, %d" % (sH, STEPS[s][1] & 1))
        a("s_cbranch_scc1 L_ex%d" % lab[0])
        for c in chunks:
            emit(c)
        a.label("L_ex%d" % lab[0])

    def endint(k):
        if role == "B":
            vq.wait(lambda t: t == ("w", k + 1))
        a("s_waitcnt lgkmcnt(0)")
        a("s_barrier")

    which = (0, 1) if role == "A" else (0,)
    TB = lambda ph: [build_T(ph, which)]
    xload(0, True)
    def eload(p):
        if role != "A":
            return
        for i in range(2):
            a("s_mov_b32 m0, %d" % (RAWE + p * 2048 + i * 1024))
            if i == 0:
                a("s_mov_b32 s58, s%d" % sK[p])
            else:
                a("s_add_u32 s58, s58, s101")
            a("s_cmp_lg_u32 s%d, %d" % (sH, p & 1))
            a("s_cbranch_scc1 L_el%d" % (2 * p + i))
            a("buffer_load_dwordx4 v%d, %s, s58 offen%s lds" % (hE, S4(sSRDX), XFLAG))
            a.label("L_el%d" % (2 * p + i))

    def second():
        bi(a)
        xload(1)
        eload(1)
        eload(2)
        if role == "A":
            vq.add(("x", 1))
            vq.add(("x", 1))

    eload(0)
    if XORD == "A":
        second()
    a("s_branch L_late%s" % role)
    a.label("@SPLIT")
    a.label("L_late%s" % role)
    a.l += LATE.l
    merge([], TB(0))
    if role == "B":
        srd(a, sSRDG, 10, 256)
        srdT(a)
        if FLAGB:
            a("v_min_u32 v%d, %d, v0" % (wPo, NITEM // 4 - 1))
            a("v_lshlrev_b32 v%d, 2, v%d" % (wPo, wPo))
        else:
            a("v_lshl_add_u32 v%d, v0, 2, 0x80" % wPo if False else "v_lshlrev_b32 v%d, 2, v0" % wPo)
            a("v_cmp_gt_u32 vcc, 2, v0")
            a("v_add_u32 v%d, 128, v%d" % (wPo, wPo))
            a("v_bfrev_b32 v%d, 2" % wPoll)
            a("v_cndmask_b32 v%d, v%d, v%d, vcc" % (wPo, wPoll, wPo))
        a("s_and_b32 s%d, s%d, 1" % (sWv, sH))
        wsetup(a, None)
        srd(a, sSRDW, 6, W_BYTES)
    if XORD == "B":
        second()
    a("s_setprio 3")
    fine(a, 3)
    xread(0)
    eread([0])
    if XORD == "C":
        second()
    for h in range(2):
        a("v_add_u32 v%d, %d, v%d" % (hTR[h], RAW1 - RAW0, hTR[h]))
    fine(a, 4)
    a("s_waitcnt lgkmcnt(%d)" % (0 if DIAG else 8 + (4 if role == "A" else 0)))
    merge([], rows(0, (0, 1)))
    a("s_waitcnt lgkmcnt(%d)" % (0 if DIAG else 2))
    merge([], rows(0, (2, 3)))
    extra(0, extra_ops(0))
    if XORD == "D":
        second()
    fine(a, 5)
    endint(-1)
    amp(a, "B0")
    fine(a, 6)
    pendw = []
    pendx = None
    B = role == "B"
    dq = [(k, g) for k in range(NCW, NG) for g in wdma(k)] if B else []
    KT = min(k for k in range(NG) if PH(k))
    polled = [False]

    def take(n, k):
        G = []
        while dq and len(G) < n and dq[0][0] - 3 < k and (dq[0][0] < KT or polled[0]):
            G.append(dq.pop(0)[1])
        return G

    def check_poll():
        vq.wait(lambda t: t == ("poll",))
        a("v_cmp_eq_u32 vcc, 0x%x, v%d" % (1 + FORCE_FALLBACK, wPoll))
        a("s_cmp_eq_u64 vcc, %s" % 3)
        a("s_cbranch_scc0 L_slow")
        a.label("L_ready")
        fine(a, 7)
        polled[0] = True

    curT = 0
    for k in range(0, NG - 1):
        work = []
        quota = QUOTA.get(k, 7)
        if k == PROBE:
            fine(a, 8)
        emit(pendw)
        pendw = []
        if pendx:
            extra(pendx[0], [pendx[1]])
            pendx = None
        if k == 1:
            merge(take(Q1A, k), [])
            if k == POLL_I and B:
                a("buffer_load_dword v%d, v%d, %s, 0 offen sc1" % (wPoll, wPo, S4(sSRDG)))
                vq.add(("poll",))
            xread(1)
            eread([1, 2])
            a("s_waitcnt lgkmcnt(%d)" % (0 if DIAG else min(15, 8 + (8 if role == "A" else 0))))
            merge([], rows(1, (0, 1)))
            a("s_waitcnt lgkmcnt(%d)" % (0 if DIAG else 2))
            merge([], rows(1, (2, 3)))
            extra(1, extra_ops(1))
            if X2_I == 1:
                xload(2)
        elif k == POLL_I and B:
            a("buffer_load_dword v%d, v%d, %s, 0 offen sc1" % (wPoll, wPo, S4(sSRDG)))
            vq.add(("poll",))
        if k == POLL_I + 1 and B:
            G = take(quota, k)
            quota -= len(G)
            merge(G, [])
            check_poll()
        if k == X2_I and k != 1:
            xload(2)
        if k == (X2_I + 1 if X2_I != 2 else 2):
            G = take(X2Q, k)
            quota -= len(G)
            merge(G, [])
            xread(2)
            work.append(["s_waitcnt lgkmcnt(0)"])
        s = (k + 3) // 2
        if k >= 2 and s <= 8:
            if STEPS[s][0] != curT:
                curT = STEPS[s][0]
                work += TB(curT)
            if k == 2:
                c = rows(s, (0, 1))
                work += c[:2]
                pendw = pendw + c[2]
            c = rows(s, (0, 1) if k % 2 == 1 else (2, 3))
            work += c[:2]
            pendw = pendw + c[2]
        G = take(quota, k)
        merge(G, work)
        if k >= 2 and k % 2 == 0 and s <= 8:
            c = extra_ops(s)
            extra(s, c[:2])
            pendx = (s, c[2])
        assert not dq or dq[0][0] > k + 1, ("stage not issued in time", k, dq[0][0])
        if k == PROBE:
            fine(a, 9)
        endint(k)
        amp(a, "T%d" % k)
        if k == PROBE:
            fine(a, 10)
    assert not dq
    if role == "A":
        a("s_branch L_xout")
        return
    a.label("L_xout")
    for t in range(3):
        a("s_barrier")
        for i in range(3):
            a("ds_read_b128 %s, v%d offset:%d" % (vr(hXA + (t * 3 + i) * 4), hRd, t * 12288 + i * 1024))
        for i in range(3):
            a("s_waitcnt lgkmcnt(%d)" % (0 if DIAG else 2 - i))
            a("buffer_store_dwordx4 %s, v%d, %s, s%d offen%s" % (vr(hXA + (t * 3 + i) * 4), hOut + i, S4(sSRDO), sSeg[t], STFLAG))
    amp_spin(a)
    fine(a, 11)
    if DIAG:
        a("s_waitcnt vmcnt(0)")
    stamp(a, 3)
    stamp_flush(a)
    a("s_endpgm")
    a = a3
    a.label("L_slow")
    a("s_mov_b32 s59, 0")
    a.label("L_slow1")
    a("buffer_load_dword v%d, v%d, %s, 0 offen sc1" % (wPoll, wPo, S4(sSRDG)))
    a("s_waitcnt vmcnt(0)")
    a("v_cmp_eq_u32 vcc, 0x%x, v%d" % (1 + FORCE_FALLBACK, wPoll))
    a("s_cmp_eq_u64 vcc, %s" % 3)
    a("s_cbranch_scc1 L_ready")
    a("s_sleep 16")
    a("s_add_u32 s59, s59, 1")
    a("s_cmp_lt_u32 s59, %d" % (3 if FORCE_FALLBACK else MAXPOLL))
    a("s_cbranch_scc1 L_slow1")
    a("s_add_u32 s100, s%d, %d" % (sRaw, RAW1))
    a("s_mov_b32 s59, 0")
    a.label("L_slow2")
    producer_loads(a, hPr, 59)
    a("s_waitcnt vmcnt(0)")
    producer_loads2(a, hPr)
    producer_rest(a, hPr, "s100")
    a("s_add_u32 s59, s59, 1")
    a("s_cmp_lt_u32 s59, %d" % NITEM)
    a("s_cbranch_scc1 L_slow2")
    a("s_sub_u32 s%d, s100, %d" % (sRaw, RAW1))
    a("s_waitcnt vmcnt(0)")
    a("s_branch L_ready")


def gen():
    a = Asm()
    a.l.append("; @launch grid=(256,1,1) block=(512,1,1) lds=%d" % LDS_TOTAL)
    a.l.append('.amdgcn_target "amdgcn-amd-amdhsa--gfx950"')
    a.l.append(".text")
    a.l.append(".globl %s_kernel" % NAME)
    a.l.append(".p2align 12")
    a.l.append(".p2align 8")
    a.l.append(".type %s_kernel,@function" % NAME)
    a.label("%s_kernel" % NAME)
    a("s_cmp_lt_u32 s2, 256")
    a("s_cbranch_scc1 L_go")
    a("s_endpgm")
    a.label("L_go")
    a("s_load_dwordx8 s[4:11], s[0:1], 0")
    a("s_load_dwordx2 s[%d:%d], s[0:1], 32" % (sSRDT, sSRDT + 1))
    a("v_lshrrev_b32 v1, 6, v0")
    a("s_nop 0")
    a("v_readfirstlane_b32 s%d, v1" % sWave)
    a("v_and_b32 v0, 63, v0")
    if AMP:
        a("s_memrealtime s[90:91]")
        a("s_memrealtime s[92:93]")
    if DIAG:
        a("v_mov_b32 v%d, 0" % vSt)
        a("s_memrealtime s[90:91]")
        a("s_memtime s[92:93]")
        for i in range(12):
            a("s_mov_b32 s%d, 0" % (66 + 2 * i))
    a("s_cmp_lg_u32 s%d, 2" % sWave)
    a("s_cbranch_scc1 L_n0")
    a("s_and_b32 s59, s2, 7")
    a("s_mul_i32 s59, s59, 23")
    a("s_lshr_b32 s58, s2, 3")
    a("s_add_u32 s59, s59, s58")
    a("s_cmp_ge_u32 s58, 23")
    a("s_cselect_b32 s59, 255, s59")
    a("s_cmp_lt_u32 s59, %d" % NITEM)
    a("s_cbranch_scc1 L_prod")
    bi(a)
    a("s_branch L_noprod0")
    a.label("L_prod")
    a("s_setprio 3")
    producer_loads(a, 120, 59)
    if PDIAG: fine(a, 3)
    a("s_waitcnt lgkmcnt(0)")
    srd(a, sSRDW, 6, W_BYTES)
    producer_loads2(a, 120)
    if PDIAG: fine(a, 4)
    a("s_branch L_prod2")
    a.label("L_n0")
    a("s_cmp_lt_u32 s%d, 4" % sWave)
    a("s_cbranch_scc1 L_c")
    a.label("L_h")

    def decode1(a):
        a("s_bfe_u32 s%d, s2, 0x20003" % sQ)
        a("s_lshr_b32 s%d, s%d, 1" % (sUf, sQ))
        a("s_and_b32 s%d, s%d, 1" % (sOdd, sQ))
        a("s_xor_b32 s%d, s%d, s%d" % (sVf, sOdd, sUf))
        a("s_lshl_b32 s56, s%d, 1" % sVf)
        a("s_sub_u32 s56, 1, s56")
        a("s_bitcmp1_b32 s2, 5")
        a("s_cselect_b32 s%d, 0, 128" % sK[0])
        a("s_cselect_b32 s%d, 64, 0" % sK[1])
        a("s_cselect_b32 s%d, 128, 64" % sK[2])

    def decode2(a):
        a("s_bfe_u32 s48, s2, 0x10005")
        a("s_bfe_u32 s49, s2, 0x10006")
        a("s_lshr_b32 s50, s2, 7")
        a("s_and_b32 s51, s2, 1")
        a("s_lshl1_add_u32 s50, s51, s50")
        a("s_bfe_u32 s51, s2, 0x20001")
        a("s_lshl_b32 s59, s%d, 3" % sQ)
        a("s_lshr_b32 s57, 0x0c1b0000, s59")
        a("s_and_b32 s57, s57, 0xff")
        a("s_lshr_b32 s58, 0x000c1b00, s59")
        a("s_and_b32 s58, s58, 0xff")
        a("s_mul_i32 s59, s51, 28")
        a("s_add_u32 s57, s57, s59")
        a("s_mul_i32 s59, s50, 28")
        a("s_add_u32 s58, s58, s59")
        a("s_lshl1_add_u32 s57, s57, s49")
        a("s_lshl1_add_u32 s58, s58, s48")
        a("s_mul_i32 s57, s57, 224")
        a("s_add_u32 s57, s57, s58")
        a("s_mul_i32 s%d, s57, 192" % sOO)
        a("s_mov_b32 s57, 86016")
        a("s_cmp_eq_u32 s%d, 1" % sOdd)
        a("s_cselect_b32 s%d, s57, 384" % sSx)
        a("s_cselect_b32 s%d, 384, s57" % sSy)
        a("s_cselect_b32 s46, s50, s51")
        a("s_cselect_b32 s47, s51, s50")
        a("s_mul_i32 s%d, s%d, s56" % (sSy, sSy))

    def decode3(a):
        a("s_lshl_b32 s57, s%d, 3" % sQ)
        for t, tab in enumerate((0x00804000, 0x40008040, 0x80400080)):
            a("s_lshr_b32 s58, 0x%08x, s57" % tab)
            a("s_and_b32 s%d, s58, 0xff" % sSeg[t])

    global LATE
    a("s_setprio %d" % HPRIO0)
    a("v_lshrrev_b32 v21, 4, v0")
    a("v_bfe_u32 v22, v0, 2, 2")
    a("v_and_b32 v23, 3, v0")
    a("v_bfrev_b32 v24, 2")
    decode1(a)
    decode2(a)
    a("s_mul_i32 s58, s%d, 3" % sVf)
    a("s_cmp_eq_u32 s46, s58")
    a("s_cselect_b32 s58, 2, 0")
    a("s_sub_u32 s%d, s%d, 4" % (sH, sWave))
    a("s_cmp_eq_u32 s%d, 0" % sH)
    a("s_cselect_b32 s58, s58, 0")
    a("v_cmp_gt_u32 vcc, s58, v21")
    a("v_mul_i32_i24 v25, s%d, v21" % sSy)
    a("v_mad_i32_i24 v25, v22, s%d, v25" % sSx)
    a("v_lshl_add_u32 v25, v23, 4, v25")
    a("s_lshl2_add_u32 s57, s%d, -2" % sH)
    a("s_mul_i32 s57, s57, s%d" % sSy)
    a("s_add_u32 s57, s57, s%d" % sOO)
    a("s_lshl1_add_u32 s57, s%d, s57" % sSx)
    a("v_add_u32 v26, s57, v25")
    a("v_cndmask_b32 v%d, v26, v24, vcc" % hMid)
    a("s_lshl_b32 s101, s%d, 2" % sSx)
    a("s_mul_i32 s59, s%d, 3" % sUf)
    a("s_cmp_eq_u32 s47, s59")
    a("s_cselect_b32 s57, 2, 0")
    a("s_cmp_eq_u32 s%d, 0" % sUf)
    a("s_cselect_b32 s58, s57, 0")
    a("s_cselect_b32 s57, 0, s57")
    a("s_sub_u32 s57, 4, s57")
    a("v_cmp_gt_u32 vcc, s58, v22")
    a("v_subrev_u32 v26, s101, v%d" % hMid)
    a("s_mul_i32 s%d, s%d, 5120" % (sRaw, sH))
    a("v_cndmask_b32 v%d, v26, v24, vcc" % hLo)
    a("v_cmp_le_u32 vcc, s57, v22")
    fine(a, 1)
    a("s_waitcnt lgkmcnt(0)")
    fine(a, 2)
    srd(a, sSRDX, 4, X_BYTES)
    a("v_cndmask_b32 v%d, v%d, v24, vcc" % (hHi, hMid))
    for i in range(5):
        a("s_add_u32 m0, s%d, %d" % (sRaw, RAW0 + i * 1024))
        if i == 0:
            a("s_mov_b32 s58, s%d" % sK[0])
        elif i >= 2:
            a("s_add_u32 s58, s58, s101")
        else:
            a("s_nop 0")
        a("buffer_load_dwordx4 v%d, %s, s58 offen%s lds" % ((hLo, hMid, hMid, hMid, hHi)[i], S4(sSRDX), XFLAG))
    a("s_sub_u32 s100, 1, s%d" % sUf)
    a("s_mul_i32 s100, s100, 6")
    a("s_cmp_ge_u32 s%d, 2" % sH)
    a("s_cbranch_scc1 L_hB")

    l = LATE = Asm()
    srd(l, sSRDO, 8, X_BYTES)
    decode3(l)
    l("v_and_b32 v24, 15, v0")
    l("v_and_b32 v25, 7, v0")
    l("v_lshlrev_b32 v26, 2, v21")
    l("v_sub_u32 v%d, v26, v25" % hM0)
    l("v_lshrrev_b32 v26, 1, v25")
    l("v_and_b32 v26, 2, v26")
    l("v_xor_b32 v26, v26, v21")
    l("v_lshlrev_b32 v26, 4, v26")
    l("v_lshl_add_u32 v26, v25, 6, v26")
    l("v_lshrrev_b32 v28, 3, v24")
    l("v_mul_u32_u24 v28, %d, v28" % DPL)
    l("s_lshl_b32 s58, s%d, 11" % sH)
    l("s_add_u32 s58, s58, %d" % DBASE)
    l("v_add3_u32 v%d, v26, v28, s58" % hDW)
    l("v_bfe_u32 v29, v0, 1, 2")
    l("v_and_b32 v30, 1, v0")
    l("v_cmp_eq_u32 vcc, v29, v21")
    l("v_sub_u32 v26, 0, v30")
    l("v_add_u32 v30, s100, v30")
    l("v_cndmask_b32 v%d, 64, v26, vcc" % hM1)
    l("s_lshr_b32 s58, s100, 1")
    l("s_and_b32 s58, s58, 2")
    l("v_xor_b32 v26, s58, v21")
    l("v_lshlrev_b32 v26, 4, v26")
    l("v_lshl_add_u32 v26, v30, 6, v26")
    l("v_lshl_add_u32 v26, v29, 9, v26")
    l("s_mov_b32 s58, %d" % (DBASE + 16 * 512))
    l("v_add3_u32 v%d, v26, v28, s58" % hEW)
    l("v_lshlrev_b32 v24, 4, v24")
    l("s_add_u32 s58, s%d, %d" % (sRaw, RAW0))
    for h in range(2):
        l("v_lshl_add_u32 v26, v21, 1, %d" % h)
        l("v_min_u32 v26, 4, v26")
        l("v_lshl_add_u32 v26, v26, 10, v24")
        l("v_add_u32 v%d, s58, v26" % hTR[h])
    l("v_lshl_add_u32 v26, v21, 8, v24")
    l("v_add_u32 v%d, %d, v26" % (hTE, RAWE))
    l("v_lshrrev_b32 v24, 2, v0")
    l("v_bfe_u32 v26, v0, 3, 2")
    l("v_xor_b32 v26, v26, v23")
    l("v_lshlrev_b32 v26, 4, v26")
    l("v_lshl_add_u32 v26, v24, 6, v26")
    l("s_mul_i32 s58, s%d, 3072" % sH)
    l("s_add_u32 s58, s58, %d" % STG)
    l("v_add_u32 v%d, s58, v26" % hRd)
    l("v_and_b32 v26, 7, v24")
    l("v_lshrrev_b32 v24, 3, v24")
    l("v_lshl_add_u32 v26, v26, 1, v24")
    l("v_mul_i32_i24 v26, s%d, v26" % sSx)
    l("v_lshl_add_u32 v26, v23, 4, v26")
    l("s_mul_i32 s58, s%d, 3" % sH)
    l("s_mul_i32 s58, s58, s%d" % sSy)
    l("s_add_u32 s58, s58, s%d" % sOO)
    l("v_add_u32 v%d, s58, v26" % hOut)
    for i in range(2):
        l("v_add_u32 v%d, s%d, v%d" % (hOut + i + 1, sSy, hOut + i))

    slow = Asm()
    far = Asm()
    a("s_lshl1_add_u32 s57, s100, -2")
    a("s_mul_i32 s57, s57, s%d" % sSx)
    a("s_mul_i32 s58, s%d, 14" % sSy)
    a("s_add_u32 s57, s57, s58")
    a("s_add_u32 s57, s57, s%d" % sOO)
    a("v_add_u32 v%d, s57, v25" % hE)
    hA = Asm()
    gen_help(hA, "A", slow)
    cut = hA.l.index("@SPLIT:")
    a.l += hA.l[:cut]
    far.l += hA.l[cut + 1:]
    a.label("L_hB")
    hB = Asm()
    gen_help(hB, "B", slow)
    cut = hB.l.index("@SPLIT:")
    a.l += hB.l[:cut]
    far.l += hB.l[cut + 1:]

    a.label("L_c")
    a("s_cmp_lg_u32 s%d, 0" % sWave)
    a("s_cbranch_scc1 L_cw")
    a("s_getpc_b64 s[56:57]")
    a.label("L_pc")
    a("s_add_u32 s56, s56, %s_kernel + 2048 - L_pc" % NAME)
    a("s_addc_u32 s57, s57, 0")
    a("s_lshr_b32 s58, s2, 3")
    a("s_mul_i32 s59, s58, 43")
    a("s_lshr_b32 s59, s59, 8")
    a("s_mul_i32 s59, s59, 6")
    a("s_sub_u32 s58, s58, s59")
    a("s_lshl_b32 s58, s58, 13")
    a("v_lshlrev_b32 v2, 7, v0")
    a("v_add_u32 v2, s58, v2")
    a("global_load_dword v%d, v2, s[56:57]" % vPref)
    bi(a)
    a("s_branch L_noprod0")
    a.label("L_cw")
    a("s_lshr_b32 s%d, s%d, 1" % (sWv, sWave))
    decode1(a)
    wsetup(a, None)
    a("s_setprio %d" % WPRIO0)
    a("s_waitcnt lgkmcnt(0)")
    srd(a, sSRDW, 6, W_BYTES)
    for k in range(NCW):
        for g in wdma(k):
            for o in g:
                a(o[0] if isinstance(o, tuple) else o)
        if k == 0:
            fine(a, 0)
            a("s_setprio %d" % WPRIO1)
            bi(a)
    fine(a, 1)
    a("s_branch L_noprod0")
    a.label("L_prod2")
    srdT(a)
    producer_rest(a, 120, "%d" % PSCR)
    fine(a, 1)
    bi(a)
    a("v_bfrev_b32 v%d, 2" % vAt)
    if FLAGB:
        a("v_writelane_b32 v%d, s59, 0" % vAt)
    else:
        a("s_and_b32 s58, s59, 1")
        a("s_lshl_b32 s58, s58, 6")
        a("v_writelane_b32 v%d, s58, 0" % vAt)
    a("s_branch L_noprod")
    a.l += far.l
    w3 = slow

    a.label("L_noprod0")
    a("v_bfrev_b32 v%d, 2" % vAt)
    a.label("L_noprod")
    a("s_waitcnt lgkmcnt(0)")
    srd(a, sSRDO, 8, X_BYTES)
    srd(a, sSRDG, 10, 256)
    a("v_mov_b32 v%d, 1" % vOne)
    decode1(a)
    decode2(a)
    decode3(a)
    a("s_and_b32 s50, s%d, 1" % sWave)
    a("s_lshr_b32 s51, s%d, 1" % sWave)
    T = 108
    vn, vg, vq, vc, t0, t1, t2 = range(T, T + 7)
    a("v_and_b32 v%d, 15, v0" % vn)
    a("v_lshrrev_b32 v%d, 4, v0" % vg)
    a("v_lshrrev_b32 v%d, 2, v%d" % (vq, vn))
    a("v_and_b32 v%d, 3, v0" % vc)
    a("v_lshl_add_u32 v%d, v%d, 3, v%d" % (t0, vg, vq))
    a("v_mul_u32_u24 v%d, 192, v%d" % (t0, t0))
    a("v_lshl_add_u32 v%d, v%d, 3, v%d" % (t0, vc, t0))
    a("v_and_b32 v%d, 1, v%d" % (t1, vg))
    a("v_xor_b32 v%d, s51, v%d" % (t1, t1))
    a("v_lshl_add_u32 v%d, v%d, 5, v%d" % (t0, t1, t0))
    a("v_lshlrev_b32 v%d, 4, v0" % t1)
    a("s_lshl_b32 s58, s51, 10")
    a("v_add_u32 v%d, s58, v%d" % (t1, t1))
    for t in range(3):
        a("v_add_u32 v%d, s%d, v%d" % (vWR[0][t], sSeg[t], t0))
        a("v_add_u32 v%d, %d, v%d" % (vWR[1][t], 2 * WST, vWR[0][t]))
        a("s_lshl_b32 s58, s%d, 5" % sSeg[t])
        a("v_add_u32 v%d, s58, v%d" % (vWT[0][t], t1))
        a("v_add_u32 v%d, %d, v%d" % (vWT[1][t], 2 * WST, vWT[0][t]))
    a("v_lshrrev_b32 v%d, 1, v%d" % (t0, vn))
    a("v_and_b32 v%d, 2, v%d" % (t0, t0))
    a("v_xor_b32 v%d, v%d, v%d" % (t0, t0, vg))
    a("v_lshlrev_b32 v%d, 4, v%d" % (t0, t0))
    a("v_and_b32 v%d, 7, v%d" % (t1, vn))
    a("v_lshl_add_u32 v%d, v%d, 6, v%d" % (t0, t1, t0))
    a("v_lshrrev_b32 v%d, 3, v%d" % (t2, vn))
    a("v_mul_u32_u24 v%d, 3072, v%d" % (t2, t2))
    a("s_mul_i32 s58, s50, 1536")
    a("s_add_u32 s58, s58, %d" % DBASE)
    a("v_add3_u32 v%d, v%d, v%d, s58" % (vX, t0, t2))
    a("v_lshrrev_b32 v%d, 1, v%d" % (t0, vg))
    a("s_lshl_b32 s58, s51, 1")
    a("v_add_u32 v%d, s58, v%d" % (t0, t0))
    a("v_bfe_u32 v%d, v%d, 1, 2" % (T + 7, vn))
    a("v_xor_b32 v%d, v%d, v%d" % (t0, t0, T + 7))
    a("v_lshlrev_b32 v%d, 4, v%d" % (t0, t0))
    a("v_lshl_add_u32 v%d, v%d, 6, v%d" % (t0, t1, t0))
    a("v_lshl_add_u32 v%d, v%d, 1, v%d" % (t0, t2, t0))
    a("v_and_b32 v%d, 1, v%d" % (t1, vg))
    a("v_lshl_add_u32 v%d, v%d, 3, v%d" % (t0, t1, t0))
    a("s_mul_i32 s58, s50, 3072")
    a("s_add_u32 s58, s58, %d" % STG)
    a("v_add_u32 v%d, s58, v%d" % (vSW, t0))
    a("s_sub_u32 s59, 1, s%d" % sUf)
    a("s_mul_i32 s59, s59, 6")
    a("v_and_b32 v%d, 1, v0" % t0)
    a("v_add_u32 v%d, s59, v%d" % (t0, t0))
    a("v_lshrrev_b32 v%d, 1, v%d" % (t1, t0))
    a("v_and_b32 v%d, 2, v%d" % (t1, t1))
    a("v_xor_b32 v%d, v%d, v%d" % (t1, t1, vg))
    a("v_lshlrev_b32 v%d, 4, v%d" % (t1, t1))
    a("v_lshl_add_u32 v%d, v%d, 6, v%d" % (t1, t0, t1))
    a("v_lshl_add_u32 v%d, v%d, 9, v%d" % (t1, T + 7, t1))
    a("v_add_u32 v%d, %d, v%d" % (vXC, DBASE + 12 * 512, t1))
    a("v_add_u32 v%d, 12, v%d" % (t1, T + 7))
    a("v_mul_i32_i24 v%d, s%d, v%d" % (t1, sSy, t1))
    a("v_lshlrev_b32 v%d, 1, v%d" % (t0, t0))
    a("v_mad_i32_i24 v%d, v%d, s%d, v%d" % (t1, t0, sSx, t1))
    a("v_lshl_add_u32 v%d, v%d, 3, v%d" % (t1, vg, t1))
    a("s_lshl_b32 s58, s51, 5")
    a("s_add_u32 s58, s58, s%d" % sOO)
    a("s_cmp_eq_u32 s%d, 3" % sQ)
    a("s_cselect_b32 s59, 0, 8")
    a("v_cmp_gt_u32 vcc, s59, v%d" % vn)
    a("v_add_u32 v%d, s58, v%d" % (t1, t1))
    a("v_bfrev_b32 v%d, 2" % t0)
    a("v_cndmask_b32 v%d, v%d, v%d, vcc" % (vCo, t0, t1))
    a("s_lshl_b32 s58, s51, 11")
    a("s_add_u32 s58, s58, %d" % CSCR)
    a("v_lshlrev_b32 v%d, 4, v0" % t0)
    a("v_add_u32 v%d, s58, v%d" % (vCs, t0))
    a("s_add_u32 s59, s%d, s%d" % (sSeg[0], sSx))
    a("s_setprio 2")

    def atom():
        a("v_mov_b32 v%d, 1" % vRet)
        a("s_waitcnt vmcnt(0)")
        a("buffer_atomic_add v%d, v%d, %s, 0 offen sc0 sc1" % (vRet, vAt, S4(sSRDG)))
        a("v_lshrrev_b32 v%d, 4, v%d" % (vAt, vAt))
        a("v_add_u32 v%d, 128, v%d" % (vAt, vAt))
        a("v_bfrev_b32 v%d, 2" % vPref)
        fine(a, 2)

    def go():
        a("s_waitcnt vmcnt(0)")
        a("v_cmp_eq_u32 vcc, %d, v%d" % (NITEM // 2 - 1, vRet))
        a("s_nop 1")
        a("v_cndmask_b32 v%d, v%d, v%d, vcc" % (vAt, vPref, vAt))
        a("buffer_store_dword v%d, v%d, %s, 0 offen sc1" % (vOne, vAt, S4(sSRDG)))
        fine(a, 0)

    a("s_cmp_eq_u32 s50, 1")
    a("s_cbranch_scc1 L_c1")
    marks = {"@T0": 3, "@T1": 4, "@T3": 5, "@T5": 6, "@T7": 7, "@T11": 8, "@T16": 9, "@E0": 10, "@E1": 11}
    if MARKS:
        marks = {"@T%d" % k: i for i, k in enumerate(MARKS)}
    if PDIAG:
        marks = {"@T1": 10, "@T3": 11}
    for mh in range(2):
        lines, tail = schedule(mh)
        if mh == 1:
            a.label("L_c1")
        if mh == 1:
            a("s_waitcnt vmcnt(%d)" % (15 * (NCW - 1)))
        elif ATOM_AT < 0:
            atom()
        a("s_barrier")
        stamp(a, 1)
        first = True
        for t in lines:
            if t == "@ATOM":
                if mh == 0:
                    atom()
            elif t == "@GO":
                if mh == 0:
                    go()
            elif t.startswith("@"):
                if t in marks:
                    fine(a, marks[t])
            else:
                if t == "s_barrier" and first:
                    first = False
                    if mh == 1:
                        a("s_waitcnt vmcnt(0)")
                a(t)
        stamp(a, 2)
        for t in tail:
            a(t)
        R = POOL0
        if mh == 0:
            a("ds_read_b128 %s, v%d" % (vr(R), vCs))
            a("ds_read_b128 %s, v%d offset:1024" % (vr(R + 4), vCs))
            a("s_waitcnt lgkmcnt(%d)" % (0 if DIAG else 2))
        else:
            a("s_waitcnt lgkmcnt(0)")
        a("s_barrier")
        if mh == 0:
            a("s_waitcnt lgkmcnt(0)")
            for i in range(8):
                a("v_add_f32 v%d, v%d, v%d" % (ACCC + i, ACCC + i, R + i))
            for e in range(2):
                s = ACCC + 4 * e
                a("v_cvt_pk_bf16_f32 v%d, v%d, v%d" % (s, s, s + 1))
                a("v_cvt_pk_bf16_f32 v%d, v%d, v%d" % (s + 1, s + 2, s + 3))
                a("buffer_store_dwordx2 %s, v%d, %s, s%d offen%s" % (vr(s, 2), vCo, S4(sSRDO), 59 if e else sSeg[0], STFLAG))
        if DIAG:
            a("s_waitcnt vmcnt(0)")
        stamp(a, 3)
        stamp_flush(a)
        a("s_endpgm")
    a.l += w3.l
    a.l.append(".fill (%d" % CODE_END + " - (. - %s_kernel)) / 4, 4, 0xbf800000" % NAME)
    a("s_endpgm")

    a.l.append('.section .rodata,"a"')
    a.l.append(".p2align 6")
    a.l.append(".amdhsa_kernel %s_kernel" % NAME)
    a.l.append("  .amdhsa_next_free_vgpr 256")
    a.l.append("  .amdhsa_next_free_sgpr 102")
    a.l.append("  .amdhsa_accum_offset 256")
    a.l.append("  .amdhsa_group_segment_fixed_size 0")
    a.l.append("  .amdhsa_kernarg_size 40")
    a.l.append("  .amdhsa_user_sgpr_count 2")
    a.l.append("  .amdhsa_user_sgpr_kernarg_segment_ptr 1")
    a.l.append("  .amdhsa_system_sgpr_workgroup_id_x 1")
    a.l.append("  .amdhsa_float_denorm_mode_32 3")
    a.l.append(".end_amdhsa_kernel")
    return a.text()


if __name__ == "__main__":
    if "-diag" in sys.argv:
        DIAG = True
        sys.argv.remove("-diag")
    for kv in [x for x in sys.argv[1:] if "=" in x]:
        k, v = kv.split("=", 1)
        globals()[k] = eval(v)
        sys.argv.remove(kv)
    out = sys.argv[1] if len(sys.argv) > 1 else "cdna_kernels/%s.s" % NAME
    open(out, "w").write(gen())
    print("wrote", out)
```

```python
import sys, struct

NAME = "standalone__dilated_atrous__vision"

DIAG = False
STFLAG = " sc1"
XFLAG = ""
BOFF = 14
WIN = 10
WINR = 6
URG = 8
BOFF0 = 20
PK = False
VPRIO = 0
MARGIN = 7
XLOOK = 30
WAITAGE = 9
ATOM_AT = -1
POLL_I = 3
MAXPOLL = 2000
HPRIO = 0
FORCE_FALLBACK = False
PROBE = -99
PDIAG = False
GO_AT = 58
LCNT = 2
AMP = None
AMPX = 3
AMPWG = 100
AMPWAVE = 7
AMPN = 0
ODIAG = 0
NCW = 2
QUOTA = {0: 0, 1: 0}
Q1A = 5
X2_I = 2
X2Q = 5
MARKS = None
NPRE = 3
FLAGB = False
BI = False
XORD = "C"
WPRIO1 = 3
WPRIO0 = 3
HPRIO0 = 3
CODE_END = 2048 + 3 * 8192 * 2 + 256

P1, P2 = 1.5, 0.625
LAM = (P1 * P2) ** 2
KAP = P1 * P1 + P2 * P2
N1 = 2 * P1 * P1 * (P1 * P1 - P2 * P2)
N2 = 2 * P2 * P2 * (P2 * P2 - P1 * P1)
AL, BE = (1 + P1 / P2) / 2, (1 - P1 / P2) / 2
BT = [[LAM, 0, -KAP, 0, 1, 0], [0, LAM, 0, -KAP, 0, 1],
      [0, -P1 * P2 * P2, -P2 * P2, P1, 1, 0], [0, P1 * P2 * P2, -P2 * P2, -P1, 1, 0],
      [0, -P2 * P1 * P1, -P1 * P1, P2, 1, 0], [0, P2 * P1 * P1, -P1 * P1, -P2, 1, 0]]


def bf16(x):
    u = struct.unpack("<I", struct.pack("<f", x))[0]
    assert u & 0xffff == 0, x
    return u >> 16


def fl(x):
    return "0x%08x" % struct.unpack("<I", struct.pack("<f", x))[0]


WST = 30720
DBASE = 3 * WST
DPL = 10240
NDB = 4
RAW0 = 2 * WST
RAW1 = DBASE + NDB * DPL
RAWE = RAW1 + 20480
PSCR = RAWE + 6144
LDS_TOTAL = PSCR + 4096
STG = DBASE + 2 * DPL
CSCR = STG + 36864

X_BYTES = 224 * 224 * 192
W_BYTES = 25 * 96 * 192
WT_BYTES = 40 * 18432
NG = 18
STEPS = [(0, 0), (0, 1), (0, 2), (1, 0), (1, 1), (1, 2), (2, 0), (2, 1), (2, 2)]


def TS():
    return LAM if STEPS[-1][0] == 0 else 1.0


def PH(k):
    return STEPS[k // 2][0]


def PC(k):
    return STEPS[k // 2][1]


sSRDX, sSRDW, sSRDO, sSRDT, sSRDG, sSRDD = 12, 16, 20, 24, 28, 96 - 4 * 0
sSRDD = 52
sQ, sOO, sSy, sSx, sWave, sOdd, sVf, sUf = range(32, 40)
sK = [40, 41, 42]
sSeg = [43, 44, 45]


class Asm:
    def __init__(self):
        self.l = []

    def __call__(self, s):
        self.l.append("    " + s)

    def label(self, s):
        self.l.append(s + ":")

    def text(self):
        return "\n".join(self.l) + "\n"


def vr(b, n=4):
    return "v[%d:%d]" % (b, b + n - 1)


def srd(a, d, lo, nbytes):
    a("s_mov_b32 s%d, s%d" % (d, lo))
    a("s_and_b32 s%d, s%d, 0xffff" % (d + 1, lo + 1))
    a("s_mov_b32 s%d, 0x%x" % (d + 2, nbytes))
    a("s_mov_b32 s%d, 0x20000" % (d + 3))


def S4(d):
    return "s[%d:%d]" % (d, d + 3)


vSt = 27


def amp(a, name):
    if AMP == name:
        a("s_memrealtime s[92:93]")


def amp_spin(a):
    if not AMP:
        return
    global AMPN
    AMPN += 1
    a("s_cmp_lg_u32 s2, %d" % AMPWG)
    a("s_cbranch_scc1 L_ampx%d" % AMPN)
    a("s_cmp_lg_u32 s%d, %d" % (sWave, AMPWAVE))
    a("s_cbranch_scc1 L_ampx%d" % AMPN)
    a("s_waitcnt vmcnt(0)")
    amp(a, "end")
    a("s_memrealtime s[60:61]")
    a("s_waitcnt lgkmcnt(0)")
    a("s_sub_u32 s92, s92, s90")
    a("s_lshl_b32 s92, s92, %d" % AMPX)
    a("s_min_u32 s92, s92, 30000")
    a.label("L_amp%d" % AMPN)
    a("s_memrealtime s[62:63]")
    a("s_waitcnt lgkmcnt(0)")
    a("s_sub_u32 s62, s62, s60")
    a("s_cmp_lt_u32 s62, s92")
    a("s_cbranch_scc1 L_amp%d" % AMPN)
    a.label("L_ampx%d" % AMPN)


def stamp(a, idx):
    if not DIAG:
        return
    a("s_memrealtime s[60:61]")
    a("s_memtime s[62:63]")
    a("s_waitcnt lgkmcnt(0)")
    for i in range(4):
        a("v_writelane_b32 v%d, s%d, %d" % (vSt, 60 + i, idx * 4 + i))


def fine(a, i):
    if DIAG:
        a("s_memtime s[%d:%d]" % (66 + 2 * i, 67 + 2 * i))


def stamp_flush(a):
    if not DIAG:
        return
    a("s_waitcnt lgkmcnt(0)")
    for i in range(12):
        a("v_writelane_b32 v%d, s%d, %d" % (vSt, 66 + 2 * i, 48 + i))
    for i in range(4):
        a("v_writelane_b32 v%d, s%d, %d" % (vSt, 90 + i, i))
    if ODIAG:
        lab = "L_od%d" % len(a.l)
        a("s_cmp_lg_u32 s%d, %d" % (sWave, ODIAG))
        a("s_cbranch_scc1 %s" % lab)
        srd(a, sSRDD, 10, 256)
        a("v_mov_b32 v1, 0")
        a("v_readlane_b32 s60, v%d, 0" % vSt)
        a("s_not_b32 s61, s60")
        a("v_writelane_b32 v1, s61, 1")
        a("v_writelane_b32 v1, s60, 2")
        for i in (1, 2, 3):
            a("v_readlane_b32 s60, v%d, %d" % (vSt, 4 * i))
            a("s_nop 3")
            a("v_writelane_b32 v1, s60, %d" % (2 + i))
        a("v_readlane_b32 s62, v%d, 2" % vSt)
        for j, ln in enumerate((6, 51, 52, 53, 54, 55, 56, 57, 10, 14)):
            a("v_readlane_b32 s60, v%d, %d" % (vSt, ln))
            a("s_nop 3")
            a("s_sub_u32 s60, s60, s62")
            a("v_writelane_b32 v1, s60, %d" % (6 + j))
        a("v_lshlrev_b32 v2, 2, v0")
        a("v_cmp_gt_u32 vcc, 6, v0")
        a("s_mov_b64 exec, vcc")
        a("buffer_atomic_umax v1, v2, %s, 0 offen sc1" % S4(sSRDD))
        a("s_mov_b64 exec, 0xffc0")
        a("buffer_atomic_add v1, v2, %s, 0 offen sc1" % S4(sSRDD))
        a("s_mov_b64 exec, -1")
        a.label(lab)
    a("s_load_dwordx2 s[10:11], s[0:1], 32")
    a("s_waitcnt lgkmcnt(0)")
    srd(a, sSRDD, 10, 4 << 20)
    a("s_lshl_b32 s60, s2, 3")
    a("s_add_u32 s60, s60, s%d" % sWave)
    a("s_lshl_b32 s60, s60, 8")
    a("s_add_u32 s60, s60, 0x100000")
    a("v_lshlrev_b32 v1, 2, v0")
    a("buffer_store_dword v%d, v1, %s, s60 offen" % (vSt, S4(sSRDD)))


NITEM = 180


def producer_loads(a, R, sItem):
    a("s_mul_i32 s46, s%d, 3641" % sItem)
    a("s_lshr_b32 s46, s46, 16")
    a("s_mul_i32 s47, s46, 18")
    a("s_sub_u32 s47, s%d, s47" % sItem)
    a("s_cmp_ge_u32 s46, 5")
    a("s_cselect_b32 s48, 5, 0")
    a("s_cselect_b32 s50, 1, 5")
    a("s_cselect_b32 s51, 5, 1")
    a("s_sub_u32 s49, s46, s48")
    a("s_mul_i32 s50, s50, s49")
    a("s_mul_i32 s50, s50, 18432")
    a("s_mul_i32 s51, s51, 18432")
    a("s_mul_i32 s56, s47, 43")
    a("s_lshr_b32 s56, s56, 8")
    a("s_mul_i32 s57, s56, 6144 - 192")
    a("s_lshl_b32 s58, s47, 5")
    a("s_add_u32 s50, s50, s57")
    a("s_add_u32 s50, s50, s58")
    a("v_lshrrev_b32 v%d, 1, v0" % (R + 68))
    a("v_mul_u32_u24 v%d, 192, v%d" % (R + 68, R + 68))
    a("v_and_b32 v%d, 1, v0" % (R + 69))
    a("v_lshl_add_u32 v%d, v%d, 4, v%d" % (R + 68, R + 69, R + 68))


def producer_loads2(a, R):
    for b in range(5):
        a("buffer_load_dwordx4 %s, v%d, %s, s50 offen" % (vr(R + 8 * b + 4), R + 68, S4(sSRDW)))
        if b < 4:
            a("s_add_u32 s50, s50, s51")


def producer_rest(a, R, scr):
    RAWR = lambda b: R + 8 * b + 4
    U = R + 40
    EO = [[R + 48, R + 56], None]
    E1 = [R + 0, R + 1, R + 2, R + 3, R + 8, R + 9, R + 10, R + 11]
    O1 = [R + 16, R + 17, R + 18, R + 19, R + 24, R + 25, R + 26, R + 27]
    E = [[R + 48 + i for i in range(8)], E1]
    O = [[R + 56 + i for i in range(8)], O1]
    vl, vt, vw = R + 69, R + 70, R + 71
    a("s_lshl_b32 s48, s48, 2")
    a("s_add_u32 s48, s48, s49")
    a("s_mul_i32 s48, s48, 18432")
    a("s_lshl_b32 s58, s47, 10")
    a("s_add_u32 s48, s48, s58")
    cf = [[2 * LAM / N1 * P1 ** i for i in range(5)], [TS() / N2 * P2 ** i for i in range(5)]]
    a("s_mov_b32 s47, 0xffff0000")
    a("v_lshlrev_b32 v%d, 4, v0" % vl)
    a("v_add_u32 v%d, %s, v%d" % (vw, scr, vl))
    a("v_lshrrev_b32 v%d, 4, v0" % U)
    a("v_and_b32 v%d, 15, v0" % vt)
    a("v_lshlrev_b32 v%d, 3, v%d" % (vt, vt))
    a("v_lshl_add_u32 v%d, v%d, 8, v%d" % (vt, U, vt))
    a("v_add_u32 v%d, %s, v%d" % (vt, scr, vt))
    for b in range(5):
        a("s_mov_b32 s50, %s" % fl(cf[0][b]))
        a("s_mov_b32 s51, %s" % fl(cf[1][b]))
        a("s_waitcnt vmcnt(%d)" % (4 - b))
        if PDIAG and R == 120 and b in (0, 4): fine(a, 5 + b // 4)
        for j in range(4):
            a("v_lshlrev_b32 v%d, 16, v%d" % (U + 2 * j, RAWR(b) + j))
            a("v_and_b32 v%d, s47, v%d" % (U + 2 * j + 1, RAWR(b) + j))
        for pi in range(2):
            d = (O if b & 1 else E)[pi]
            for i in range(8):
                a("%s v%d, s%d, v%d" % ("v_mul_f32" if b < 2 else "v_fmac_f32", d[i], 50 + pi, U + i))
    a("s_mov_b32 s50, %s" % fl(AL / BE))
    for pi in range(2):
        for i in range(8):
            a("v_add_f32 v%d, v%d, v%d" % (U + i, E[pi][i], O[pi][i]))
        for i in range(8):
            a("v_sub_f32 v%d, v%d, v%d" % (O[pi][i], E[pi][i], O[pi][i]))
        for j in range(4):
            a("v_cvt_pk_bf16_f32 v%d, v%d, v%d" % (RAWR(2 * pi) + j, U + 2 * j, U + 2 * j + 1))
        a("ds_write_b128 v%d, %s offset:%d" % (vw, vr(RAWR(2 * pi)), 2 * pi * 1024))
        if pi:
            for i in range(8):
                a("v_mul_f32 v%d, s50, v%d" % (O[pi][i], O[pi][i]))
        for j in range(4):
            a("v_cvt_pk_bf16_f32 v%d, v%d, v%d" % (RAWR(2 * pi + 1) + j, O[pi][2 * j], O[pi][2 * j + 1]))
        a("ds_write_b128 v%d, %s offset:%d" % (vw, vr(RAWR(2 * pi + 1)), (2 * pi + 1) * 1024))
        for k in (2 * pi, 2 * pi + 1):
            for h in range(2):
                a("ds_read_b64_tr_b16 %s, v%d offset:%d" % (vr(R + 48 + 4 * k + 2 * h, 2), vt, k * 1024 + h * 128))
    if PDIAG and R == 120: fine(a, 7)
    for k in range(4):
        a("s_waitcnt lgkmcnt(%d)" % (0 if DIAG else (8, 6, 2, 0)[k]))
        if PDIAG and R == 120 and k == 0: fine(a, 9)
        a("buffer_store_dwordx4 %s, v%d, %s, s48 offen sc1" % (vr(R + 48 + 4 * k), vl, S4(sSRDT)))
        if k < 3:
            a("s_add_u32 s48, s48, %d" % (5 * 18432))


vX, vXC = 1, 2
vWR = [[3, 4, 5], [6, 7, 8]]
vWT = [[9, 10, 11], [12, 13, 14]]
vSW = 15
vCs = 16
vCo = 17
vAt, vOne = 18, 19
vPref = 20
vRet = 21
ACC = 28
ACCC = ACC + 72
POOL0 = ACCC + 8
NPOOL = (256 - POOL0) // 4


class Frag:
    def __init__(self, key, reads, valid, release):
        self.key, self.reads, self.valid, self.release = key, reads, valid, release
        self.first = self.last = self.reg = None
        self.issued = 0


def acc(e, t, r):
    return ACC + e * 36 + (t * 3 + r) * 4


def build_stream(mh):
    groups = []
    for k in range(NG):
        e = k & 1
        slot = k % 3
        hi = 1 if slot == 2 else 0
        so = (slot - 2 * hi) * WST
        rel = k if k < NG - 3 else None
        if PH(k) == 0:
            wf = [[Frag(("w", k, a_, t), [("ds_read_b64_tr_b16 %%s, v%d offset:%d" % (vWR[hi][t], so + a_ * 6144 + h * 768), 2 * h, 2) for h in range(2)], k - 1, rel)
                   for t in range(3)] for a_ in range(5)]
        else:
            wf = [[Frag(("w", k, a_, t), [("ds_read_b128 %%s, v%d offset:%d" % (vWT[hi][t], so + a_ * 6144), 0, 4)], k - 1, rel)
                   for t in range(3)] for a_ in range(5)]
        xrel = k if k <= NG - 3 else None
        do = (k % NDB) * DPL
        X = [Frag(("x", k, s), [("ds_read_b128 %%s, v%d offset:%d" % (vX, do + s * 512), 0, 4)], k - 1, xrel) for s in range(7)]
        lo = [0, 1, 2] if (k // 2 + k) % 2 == 0 else [0, 1]
        cen = lo if mh == 0 else [x for x in range(5) if x not in lo]
        T = []
        for t in range(3):
            L = [(acc(e, t, r), wf[a_][t], X[r + a_]) for r in range(3) for a_ in range(5)]
            if t == 0:
                C = [(ACCC + 4 * e, wf[a_][0], Frag(("c", k, a_), [("ds_read_b128 %%s, v%d offset:%d" % (vXC, do + a_ * 512), 0, 4)], k - 1, xrel)) for a_ in cen]
                L = L[:10] + C + L[10:]
            T.append(L)
        groups.append(T)
    M, starts = [], []
    for k in range(NG - 2):
        starts.append(len(M))
        for t in range(3):
            M += groups[k][t]
    starts.append(len(M))
    for t in range(3):
        M += groups[NG - 2][t] + groups[NG - 1][t]
    return M, starts


def schedule(mh):
    M, starts = build_stream(mh)
    N = len(M)
    bpos = {k: starts[k] + BOFF for k in range(NG - 2)}
    bpos[0] = starts[0] + BOFF0
    bpos[NG - 2] = starts[NG - 2] + 3
    bpos[-1] = -1
    frags = []
    for i, (ac, w, x) in enumerate(M):
        for f in (w, x):
            if f.first is None:
                f.first = i
                frags.append(f)
            f.last = i
    for f in frags:
        f.dead = f.first - MARGIN
        if f.release is not None:
            f.dead = min(f.dead, bpos[f.release] - MARGIN)
    pend = sorted(frags, key=lambda f: (f.dead, f.first))
    free = list(range(NPOOL))
    freeat = {}
    for f in frags:
        freeat.setdefault(f.last, []).append(f)
    uses = {}
    for i, (ac, w, x) in enumerate(M):
        uses.setdefault(ac, []).append(i)

    tasks = []
    chains = []
    pairs = [(acc(0, t, r), acc(1, t, r), t, r) for t in range(3) for r in range(3)] + [(ACCC, ACCC + 4, 0, 9)]
    kk = AL / 2 * TS() / LAM
    for ks in range(1, 9):
        tr = (STEPS[ks - 1][0], STEPS[ks][0])
        if tr[0] == tr[1]:
            continue
        bd = starts[2 * ks]
        tl = []
        for s0, s1, t, r in pairs:
            lastu = max(u for u in uses[s0] + uses[s1] if u < bd)
            next0 = min(u for u in uses[s0] if u >= bd)
            next1 = min(u for u in uses[s1] if u >= bd)
            I4 = range(4)
            if tr == (0, 1):
                o0 = ["v_fmac_f32 v%d, %s, v%d" % (s0 + i, fl(LAM / P1), s1 + i) for i in I4]
                o0 += ["v_fmamk_f32 v%d, v%d, %s, v%d" % (s1 + i, s1 + i, fl(-2 * LAM / P1), s0 + i) for i in I4]
            elif tr == (1, 2):
                l0 = max(u for u in uses[s0] if u < bd)
                tl.append((l0 + 8, next0 - 3, ["v_mul_f32 v%d, %s, v%d" % (s0 + i, fl(kk), s0 + i) for i in I4]))
                o0 = ["v_fmac_f32 v%d, %s, v%d" % (s0 + i, fl(kk * BE / AL), s1 + i) for i in I4]
                o0 += ["v_fmamk_f32 v%d, v%d, %s, v%d" % (s1 + i, s1 + i, fl(kk * (AL / BE - BE / AL)), s0 + i) for i in I4]
            else:
                assert tr == (2, 0)
                o0 = ["v_fmac_f32 v%d, %s, v%d" % (s0 + i, fl(BE / AL), s1 + i) for i in I4]
                o0 += ["v_fmamk_f32 v%d, v%d, %s, v%d" % (s1 + i, s1 + i, fl(-2 * BE / AL), s0 + i) for i in I4]
                tl.append((lastu + 8, next1 - 3, ["v_mul_f32 v%d, %s, v%d" % (s1 + i, fl(P2 / LAM), s1 + i) for i in I4]))
            tl.append((lastu + 8, next0 - 3, o0))
        chains += [[e_, l_, list(ops)] for e_, l_, ops in tl]
    chains.sort(key=lambda z: (z[1], z[0]))
    tl = []
    for s0, s1, t, r in pairs:
      for e, s in ((0, s0), (1, s1)):
        if STEPS[-1][0] == 0:
            lastu = max(uses[s])
            ops = [("v_mul_f32 v%d, %s, v%d" % (s + i, fl(1 / LAM), s + i), None) for i in range(4)] if e == 0 else []
        else:
            lastu = max(uses[s0] + uses[s1])
            if e == 0:
                ops = [("v_fmac_f32 v%d, %s, v%d" % (s0 + i, fl(BE / AL), s1 + i), None) for i in range(4)]
                ops += [("v_mul_f32 v%d, %s, v%d" % (s1 + i, fl(-2 * P2 * BE / AL), s1 + i), None) for i in range(4)]
                ops += [("v_fmac_f32 v%d, %s, v%d" % (s1 + i, fl(P2), s0 + i), None) for i in range(4)]
            else:
                ops = []
        if r == 9:
            if mh == 1:
                ops += [("ds_write_b128 v%d, %s offset:%d" % (vCs, vr(s), e * 1024), ("E", 0))]
        else:
            ops += [("v_cvt_pk_bf16_f32 v%d, v%d, v%d" % (s, s, s + 1), None), ("v_cvt_pk_bf16_f32 v%d, v%d, v%d" % (s + 1, s + 2, s + 3), None),
                    ("ds_write_b64 v%d, %s offset:%d" % (vSW, vr(s, 2), t * 12288 + r * 1024 + e * 512), ("E", t))]
        tl.append((lastu + 8, ops, t))
    tl.sort(key=lambda z: z[0])
    for idx, (e_, ops, t) in enumerate(tl):
        tasks += [(e_, None, o, k) for o, k in ops]
        if t < 2 and all(z[2] != t for z in tl[idx + 1:]):
            tasks.append((e_, None, "@E", ("BAR", t)))

    gap2bar = {v: k for k, v in bpos.items() if k >= 0}
    out, q = [], []
    stats = dict(wait=0, minslack=10 ** 9)

    def wait_for(pred, now):
        last = -1
        for j, e in enumerate(q):
            if pred(e):
                last = j
        if last < 0:
            return
        if now > 12:
            stats["minslack"] = min(stats["minslack"], now - q[last][0])
        for j, e in enumerate(q):
            if e[0] <= now - WAITAGE:
                last = max(last, j)
        n = min(len(q) - 1 - last, 15)
        out.append("s_waitcnt lgkmcnt(%d)" % n)
        stats["wait"] += 1
        del q[:len(q) - n]

    def try_issue(gap, urgent):
        for f in pend:
            if bpos[f.valid] > gap:
                continue
            if f.key[0] in "xc" and f.first - gap > XLOOK:
                continue
            if urgent is not None and f.dead - gap > urgent:
                return False
            if f.reg is None:
                if not free:
                    return False
                f.reg = POOL0 + 4 * free.pop(0)
            fmt, ro, n = f.reads[f.issued]
            out.append(fmt % vr(f.reg + ro, n))
            q.append((gap, f, f.release))
            f.issued += 1
            if f.issued == len(f.reads):
                pend.remove(f)
            return True
        return False

    ebar = [None]

    def chain_urgent(gap):
        need = 0
        for c in chains:
            need += len(c[2])
            if c[0] <= gap and need > 2 * (c[1] - gap) - 2:
                return True
            if c[1] - gap > 40:
                break
        return False

    def try_task(gap):
        for c in chains:
            if c[0] <= gap:
                assert gap <= c[1], ("chain late", gap, c)
                out.append(c[2].pop(0))
                if not c[2]:
                    chains.remove(c)
                return True
        if not tasks or tasks[0][0] > gap:
            return False
        e_, l_, o, k = tasks[0]
        if k and k[0] == "BAR":
            tasks.pop(0)
            ebar[0] = (gap, k[1])
            return try_task(gap)
        assert l_ is None or gap <= l_, ("task late", gap, tasks[0])
        tasks.pop(0)
        out.append(o)
        if k:
            q.append((gap, None, k))
        return True

    while pend and pend[0].dead < 0:
        assert try_issue(-1, None)
    seen = set()
    for i, (ac, w, x) in enumerate(M):
        for f in (w, x):
            assert f.issued == len(f.reads), (i, f.key)
        wait_for(lambda e: e[1] is w or e[1] is x, i)
        c = vr(ac) if ac in seen else "0"
        seen.add(ac)
        out.append("v_mfma_f32_16x16x32_bf16 %s, %s, %s, %s" % (vr(ac), vr(w.reg), vr(x.reg), c))
        for f in freeat.get(i, []):
            free.append((f.reg - POOL0) // 4)
        if i == ATOM_AT:
            out.append("@ATOM")
            continue
        if i == GO_AT:
            out.append("@GO")
            continue
        if i in gap2bar:
            k = gap2bar[i]
            assert not any(f.release == k for f in pend), k
            wait_for(lambda e: e[2] == k, i)
            out.append("s_barrier")
            out.append("@T%d" % k)
            continue
        if ebar[0] and i - ebar[0][0] >= 6:
            t = ebar[0][1]
            wait_for(lambda e: e[2] == ("E", t), i)
            out.append("s_barrier")
            out.append("@E%d" % t)
            ebar[0] = None
            continue
        n = 0
        busy = bool(tasks) and tasks[0][0] <= i
        inwin = any(0 < i - b <= (WIN if PH(k + 1) else WINR) and 2 <= k < NG - 3 for b, k in gap2bar.items())
        if not inwin and try_issue(i, 12 if (busy and not WIN) else None):
            n += 1
            if try_issue(i, URG):
                n += 1
        while n < (4 if chain_urgent(i) else 2) and try_task(i):
            n += 1
    assert not pend and not chains
    tail = []
    if ebar[0]:
        tail += ["s_waitcnt lgkmcnt(0)", "s_barrier"]
    tail.append("s_nop 7")
    for e_, l_, o, k in tasks:
        if k and k[0] == "BAR":
            tail += ["s_waitcnt lgkmcnt(0)", "s_barrier"]
        else:
            tail.append(o)
    sys.stderr.write("mh=%d mfma=%d lines=%d waits=%d minslack=%d tail=%d\n" % (mh, N, len(out), stats["wait"], stats["minslack"], len(tail)))
    nb = sum(1 for o in out + tail if o == "s_barrier")
    assert nb == (NG - 1) + 2, nb
    return out, tail


hLo, hMid, hHi, hE, hDW, hEW, hRd, hTE, hM0, hM1 = range(1, 11)
hTR = [11, 12]
hOut = 13
wP = [16, 17, 18]
wPoll, wPo = 19, 20
hC = 21
hTm = 28
hAcc = 36
hResL = {"A": [52, 56, 60, 64, 188, 192, 196, 200], "B": [52, 56, 60, 64, 164, 168, 172, 176]}
NRES = 8
hXA = 68
hXE = 164
hPr = 184
sH, sRaw = 46, 47
sG0, sGa, sG4, sT0_, sTa_, sWv = 94, 95, 96, 97, 98, 99
LATE = None


class VQ:
    def __init__(self, a):
        self.a, self.q = a, []

    def add(self, tag):
        self.q.append(tag)

    def wait(self, pred):
        last = -1
        for j, t in enumerate(self.q):
            if pred(t):
                last = j
        if last < 0:
            return
        n = len(self.q) - 1 - last
        self.a("s_waitcnt vmcnt(%d)" % min(n, 63))
        del self.q[:last + 1]


def bi(a):
    if BI:
        a("s_barrier")


def srdT(a):
    a("s_and_b32 s%d, s%d, 0xffff" % (sSRDT + 1, sSRDT + 1))
    a("s_mov_b32 s%d, 0x%x" % (sSRDT + 2, WT_BYTES))
    a("s_mov_b32 s%d, 0x20000" % (sSRDT + 3))


def build_T(ph, which):
    ops = []
    ops.append("v_and_b32 v%d, 8, v0" % hC)
    ops.append("v_cmp_ne_u32 vcc, 0, v%d" % hC)
    for m in range(3):
        c = [bf16(BT[2 * ph + e][2 * m]) | bf16(BT[2 * ph + e][2 * m + 1]) << 16 for e in range(2)]
        ops.append("v_mov_b32 v%d, 0x%x" % (hC + m, c[0]))
        ops.append("v_mov_b32 v%d, 0x%x" % (hC + 3 + m, c[1]))
    for m in range(3):
        ops.append("v_cndmask_b32 v%d, v%d, v%d, vcc" % (hC + m, hC + m, hC + 3 + m))
    for w in which:
        src = (hM0, hM1)[w]
        for d in range(-3, 3):
            ops.append("v_cmp_eq_i32 vcc, %d, v%d" % (d, src))
            ops.append("s_nop 1")
            for j in range(4):
                m = d + j
                if 0 <= m <= 2:
                    r = hTm + 4 * w + j
                    first = (m == 0)
                    ops.append("v_cndmask_b32 v%d, %s, v%d, vcc" % (r, "0" if first else "v%d" % r, hC + m))
    ops.append("s_nop 1")
    return ops


def wdma(k):
    p = PC(k)
    G = []
    for t in range(5):
        g = []
        if t == 0:
            g.append("s_mul_i32 s59, s%d, 96" % sK[p])
            if PH(k) == 0:
                g.append("s_add_u32 s59, s59, s%d" % (sG4 if k & 1 else sG0))
            else:
                term = 2 * (PH(k) - 1) + (k & 1)
                g.append("s_add_u32 s59, s59, s%d" % sT0_)
                if term:
                    g.append("s_add_u32 s59, s59, %d" % (term * 5 * 18432))
        g.append("s_add_u32 m0, s%d, %d" % (sWv, (k % 3) * WST + t * 6144))
        g.append("s_add_u32 s59, s59, s%d" % (sGa if PH(k) == 0 else sTa_) if t else "s_nop 0")
        for j in range(3):
            if PH(k) == 0:
                g.append(("buffer_load_dwordx4 v%d, %s, s59 offen offset:%d lds" % (wP[j], S4(sSRDW), j * 1024), ("w", k)))
            else:
                g.append(("buffer_load_dwordx4 v%d, %s, s59 offen offset:%d sc1 lds" % (wP[0], S4(sSRDT), j * 1024), ("w", k)))
        G.append(g)
    return G


def wsetup(a, sel):
    a("s_mul_i32 s%d, s%d, 3072" % (sWv, sWv))
    a("s_mov_b32 s57, 92160")
    a("s_cmp_eq_u32 s%d, 1" % sOdd)
    a("s_cselect_b32 s%d, 18432, s57" % sGa)
    a("s_cselect_b32 s%d, s57, 18432" % sG4)
    a("s_mul_i32 s%d, s%d, s%d" % (sG0, sGa, sVf))
    a("s_lshl2_add_u32 s%d, s%d, s%d" % (sG0, sG0, sWv))
    a("s_mul_i32 s%d, s%d, s56" % (sGa, sGa))
    a("s_lshl2_add_u32 s%d, s%d, s%d" % (sG4, sG4, sG0))
    a("s_mul_i32 s%d, s%d, 5" % (sT0_, sOdd))
    a("s_add_u32 s%d, s%d, s%d" % (sT0_, sT0_, sVf))
    a("s_mul_i32 s%d, s%d, %d" % (sT0_, sT0_, 4 * 18432))
    a("s_add_u32 s%d, s%d, s%d" % (sT0_, sT0_, sWv))
    a("s_mul_i32 s%d, s56, 18432" % sTa_)
    a("v_lshlrev_b32 v%d, 4, v0" % wP[0])
    a("v_and_b32 v%d, 32, v0" % wP[1])
    a("v_xor_b32 v%d, v%d, v%d" % (wP[1], wP[1], wP[0]))
    a("v_xor_b32 v%d, 32, v%d" % (wP[2], wP[0]))

def gen_help(a, role, a3):
    vq = VQ(a)
    XA = lambda p, row, m: hXA + ((p * 4 + row) * 2 + m) * 4
    XE = lambda p, m: hXE + (p * 2 + m) * 4
    rr = [0]
    lab = [0]

    def xload(p, count_only=False):
        for i in range(5):
            if not count_only:
                a("s_add_u32 m0, s%d, %d" % (sRaw, (RAW0 if p == 0 else RAW1) + i * 1024))
                if i == 0:
                    a("s_mov_b32 s58, s%d" % sK[p])
                elif i >= 2:
                    a("s_add_u32 s58, s58, s101")
                else:
                    a("s_nop 0")
                a("buffer_load_dwordx4 v%d, %s, s58 offen%s lds" % ((hLo, hMid, hMid, hMid, hHi)[i], S4(sSRDX), XFLAG))
            vq.add(("x", p))

    def xread(p):
        vq.wait(lambda t: t == ("x", p))
        for row in range(4):
            for m in range(2):
                for h in range(2):
                    a("ds_read_b64_tr_b16 %s, v%d offset:%d" % (vr(XA(p, row, m) + 2 * h, 2), hTR[h], row * 256 + m * 8))

    def eread(ps):
        if role == "A":
            for p in ps:
                for m in range(2):
                    for h in range(2):
                        a("ds_read_b64_tr_b16 %s, v%d offset:%d" % (vr(XE(p, m) + 2 * h, 2), hTE, p * 2048 + h * 1024 + m * 8))

    def emit(g):
        for o in g:
            if isinstance(o, tuple):
                a(o[0])
                vq.add(o[1])
            else:
                a(o)

    def merge(G, chunks):
        G, chunks = list(G), list(chunks)
        while G or chunks:
            if G:
                emit(G.pop(0))
            if chunks:
                emit(chunks.pop(0))

    def rows_ops(srcs, T, dsts):
        c1, c2, c3 = [], [], []
        regs = []
        for i, (A0, A1) in enumerate(srcs):
            for m, A in enumerate((A0, A1)):
                c1.append("v_mfma_f32_16x16x32_bf16 %s, %s, %s, 0" % (vr(hAcc + (2 * i + m) * 4), vr(A), vr(T)))
        c2.append("s_nop %d" % (7 if len(srcs) == 1 else 5))
        for i in range(len(srcs)):
            rr[0] = (rr[0] + 1) % NRES
            r = hResL[role][rr[0]]
            regs.append(r)
            for m in range(2):
                d = hAcc + (2 * i + m) * 4
                c2.append("v_cvt_pk_bf16_f32 v%d, v%d, v%d" % (r + 2 * m, d, d + 1))
                c2.append("v_cvt_pk_bf16_f32 v%d, v%d, v%d" % (r + 2 * m + 1, d + 2, d + 3))
        for r, (ad, off) in zip(regs, dsts):
            c3.append("ds_write_b128 v%d, %s offset:%d" % (ad, vr(r), off))
        return [c1, c2, c3]

    def rows(s, rws):
        p = STEPS[s][1]
        return rows_ops([(XA(p, r, 0), XA(p, r, 1)) for r in rws], hTm, [(hDW, ((2 * s) % NDB) * DPL + r * 512) for r in rws])

    def extra_ops(s):
        p = STEPS[s][1]
        return rows_ops([(XE(p, 0), XE(p, 1))], hTm + 4, [(hEW, ((2 * s) % NDB) * DPL)])

    def extra(s, chunks):
        if role != "A":
            return
        lab[0] += 1
        a("s_cmp_lg_u32 s%d, %d" % (sH, STEPS[s][1] & 1))
        a("s_cbranch_scc1 L_ex%d" % lab[0])
        for c in chunks:
            emit(c)
        a.label("L_ex%d" % lab[0])

    def endint(k):
        if role == "B":
            vq.wait(lambda t: t == ("w", k + 1))
        a("s_waitcnt lgkmcnt(0)")
        a("s_barrier")

    which = (0, 1) if role == "A" else (0,)
    TB = lambda ph: [build_T(ph, which)]
    xload(0, True)
    def eload(p):
        if role != "A":
            return
        for i in range(2):
            a("s_mov_b32 m0, %d" % (RAWE + p * 2048 + i * 1024))
            if i == 0:
                a("s_mov_b32 s58, s%d" % sK[p])
            else:
                a("s_add_u32 s58, s58, s101")
            a("s_cmp_lg_u32 s%d, %d" % (sH, p & 1))
            a("s_cbranch_scc1 L_el%d" % (2 * p + i))
            a("buffer_load_dwordx4 v%d, %s, s58 offen%s lds" % (hE, S4(sSRDX), XFLAG))
            a.label("L_el%d" % (2 * p + i))

    def second():
        bi(a)
        xload(1)
        eload(1)
        eload(2)
        if role == "A":
            vq.add(("x", 1))
            vq.add(("x", 1))

    eload(0)
    if XORD == "A":
        second()
    a("s_branch L_late%s" % role)
    a.label("@SPLIT")
    a.label("L_late%s" % role)
    a.l += LATE.l
    merge([], TB(0))
    if role == "B":
        srd(a, sSRDG, 10, 256)
        srdT(a)
        if FLAGB:
            a("v_min_u32 v%d, %d, v0" % (wPo, NITEM // 4 - 1))
            a("v_lshlrev_b32 v%d, 2, v%d" % (wPo, wPo))
        else:
            a("v_lshl_add_u32 v%d, v0, 2, 0x80" % wPo if False else "v_lshlrev_b32 v%d, 2, v0" % wPo)
            a("v_cmp_gt_u32 vcc, 2, v0")
            a("v_add_u32 v%d, 128, v%d" % (wPo, wPo))
            a("v_bfrev_b32 v%d, 2" % wPoll)
            a("v_cndmask_b32 v%d, v%d, v%d, vcc" % (wPo, wPoll, wPo))
        a("s_and_b32 s%d, s%d, 1" % (sWv, sH))
        wsetup(a, None)
        srd(a, sSRDW, 6, W_BYTES)
    if XORD == "B":
        second()
    a("s_setprio 3")
    fine(a, 3)
    amp(a, "late")
    xread(0)
    amp(a, "x0")
    eread([0])
    if XORD == "C":
        second()
    for h in range(2):
        a("v_add_u32 v%d, %d, v%d" % (hTR[h], RAW1 - RAW0, hTR[h]))
    fine(a, 4)
    a("s_waitcnt lgkmcnt(%d)" % (0 if DIAG else 8 + (4 if role == "A" else 0)))
    merge([], rows(0, (0, 1)))
    a("s_waitcnt lgkmcnt(%d)" % (0 if DIAG else 2))
    merge([], rows(0, (2, 3)))
    extra(0, extra_ops(0))
    if XORD == "D":
        second()
    fine(a, 5)
    endint(-1)
    amp(a, "B0")
    fine(a, 6)
    pendw = []
    pendx = None
    B = role == "B"
    dq = [(k, g) for k in range(NCW, NG) for g in wdma(k)] if B else []
    KT = min(k for k in range(NG) if PH(k))
    polled = [False]

    def take(n, k):
        G = []
        while dq and len(G) < n and dq[0][0] - 3 < k and (dq[0][0] < KT or polled[0]):
            G.append(dq.pop(0)[1])
        return G

    def check_poll():
        vq.wait(lambda t: t == ("poll",))
        a("v_cmp_eq_u32 vcc, 0x%x, v%d" % (1 + FORCE_FALLBACK, wPoll))
        a("s_cmp_eq_u64 vcc, %s" % 3)
        a("s_cbranch_scc0 L_slow")
        a.label("L_ready")
        amp(a, "ready")
        fine(a, 7)
        polled[0] = True

    curT = 0
    for k in range(0, NG - 1):
        work = []
        quota = QUOTA.get(k, 7)
        if k == PROBE:
            fine(a, 8)
        emit(pendw)
        pendw = []
        if pendx:
            extra(pendx[0], [pendx[1]])
            pendx = None
        if k == 1:
            merge(take(Q1A, k), [])
            if k == POLL_I and B:
                a("buffer_load_dword v%d, v%d, %s, 0 offen sc1" % (wPoll, wPo, S4(sSRDG)))
                vq.add(("poll",))
            xread(1)
            amp(a, "x1")
            eread([1, 2])
            a("s_waitcnt lgkmcnt(%d)" % (0 if DIAG else min(15, 8 + (8 if role == "A" else 0))))
            merge([], rows(1, (0, 1)))
            a("s_waitcnt lgkmcnt(%d)" % (0 if DIAG else 2))
            merge([], rows(1, (2, 3)))
            extra(1, extra_ops(1))
            if X2_I == 1:
                xload(2)
        elif k == POLL_I and B:
            a("buffer_load_dword v%d, v%d, %s, 0 offen sc1" % (wPoll, wPo, S4(sSRDG)))
            vq.add(("poll",))
        if k == POLL_I + 1 and B:
            G = take(quota, k)
            quota -= len(G)
            merge(G, [])
            check_poll()
        if k == X2_I and k != 1:
            xload(2)
        if k == (X2_I + 1 if X2_I != 2 else 2):
            G = take(X2Q, k)
            quota -= len(G)
            merge(G, [])
            xread(2)
            work.append(["s_waitcnt lgkmcnt(0)"])
        s = (k + 3) // 2
        if k >= 2 and s <= 8:
            if STEPS[s][0] != curT:
                curT = STEPS[s][0]
                work += TB(curT)
            if k == 2:
                c = rows(s, (0, 1))
                work += c[:2]
                pendw = pendw + c[2]
            c = rows(s, (0, 1) if k % 2 == 1 else (2, 3))
            work += c[:2]
            pendw = pendw + c[2]
        G = take(quota, k)
        merge(G, work)
        if k >= 2 and k % 2 == 0 and s <= 8:
            c = extra_ops(s)
            extra(s, c[:2])
            pendx = (s, c[2])
        assert not dq or dq[0][0] > k + 1, ("stage not issued in time", k, dq[0][0])
        if k == PROBE:
            fine(a, 9)
        endint(k)
        amp(a, "T%d" % k)
        if k == PROBE:
            fine(a, 10)
    assert not dq
    if role == "A":
        a("s_branch L_xout")
        return
    a.label("L_xout")
    for t in range(3):
        a("s_barrier")
        for i in range(3):
            a("ds_read_b128 %s, v%d offset:%d" % (vr(hXA + (t * 3 + i) * 4), hRd, t * 12288 + i * 1024))
        for i in range(3):
            a("s_waitcnt lgkmcnt(%d)" % (0 if DIAG else 2 - i))
            a("buffer_store_dwordx4 %s, v%d, %s, s%d offen%s" % (vr(hXA + (t * 3 + i) * 4), hOut + i, S4(sSRDO), sSeg[t], STFLAG))
    amp_spin(a)
    fine(a, 11)
    if DIAG:
        a("s_waitcnt vmcnt(0)")
    stamp(a, 3)
    stamp_flush(a)
    a("s_endpgm")
    a = a3
    a.label("L_slow")
    a("s_mov_b32 s59, 0")
    a.label("L_slow1")
    a("buffer_load_dword v%d, v%d, %s, 0 offen sc1" % (wPoll, wPo, S4(sSRDG)))
    a("s_waitcnt vmcnt(0)")
    a("v_cmp_eq_u32 vcc, 0x%x, v%d" % (1 + FORCE_FALLBACK, wPoll))
    a("s_cmp_eq_u64 vcc, %s" % 3)
    a("s_cbranch_scc1 L_ready")
    a("s_sleep 16")
    a("s_add_u32 s59, s59, 1")
    a("s_cmp_lt_u32 s59, %d" % (3 if FORCE_FALLBACK else MAXPOLL))
    a("s_cbranch_scc1 L_slow1")
    a("s_add_u32 s100, s%d, %d" % (sRaw, RAW1))
    a("s_mov_b32 s59, 0")
    a.label("L_slow2")
    producer_loads(a, hPr, 59)
    a("s_waitcnt vmcnt(0)")
    producer_loads2(a, hPr)
    producer_rest(a, hPr, "s100")
    a("s_add_u32 s59, s59, 1")
    a("s_cmp_lt_u32 s59, %d" % NITEM)
    a("s_cbranch_scc1 L_slow2")
    a("s_sub_u32 s%d, s100, %d" % (sRaw, RAW1))
    a("s_waitcnt vmcnt(0)")
    a("s_branch L_ready")


def gen():
    a = Asm()
    a.l.append("; @launch grid=(256,1,1) block=(512,1,1) lds=%d" % LDS_TOTAL)
    a.l.append('.amdgcn_target "amdgcn-amd-amdhsa--gfx950"')
    a.l.append(".text")
    a.l.append(".globl %s_kernel" % NAME)
    a.l.append(".p2align 12")
    a.l.append(".p2align 8")
    a.l.append(".type %s_kernel,@function" % NAME)
    a.label("%s_kernel" % NAME)
    a("s_cmp_lt_u32 s2, 256")
    a("s_cbranch_scc1 L_go")
    a("s_endpgm")
    a.label("L_go")
    a("s_load_dwordx8 s[4:11], s[0:1], 0")
    a("s_load_dwordx2 s[%d:%d], s[0:1], 32" % (sSRDT, sSRDT + 1))
    a("v_lshrrev_b32 v1, 6, v0")
    a("s_nop 0")
    a("v_readfirstlane_b32 s%d, v1" % sWave)
    a("v_and_b32 v0, 63, v0")
    if AMP:
        a("s_memrealtime s[90:91]")
        a("s_memrealtime s[92:93]")
    if DIAG:
        a("v_mov_b32 v%d, 0" % vSt)
        a("s_memrealtime s[90:91]")
        a("s_memtime s[92:93]")
        for i in range(12):
            a("s_mov_b32 s%d, 0" % (66 + 2 * i))
    a("s_cmp_lg_u32 s%d, 2" % sWave)
    a("s_cbranch_scc1 L_n0")
    a("s_and_b32 s59, s2, 7")
    a("s_mul_i32 s59, s59, 23")
    a("s_lshr_b32 s58, s2, 3")
    a("s_add_u32 s59, s59, s58")
    a("s_cmp_ge_u32 s58, 23")
    a("s_cselect_b32 s59, 255, s59")
    a("s_cmp_lt_u32 s59, %d" % NITEM)
    a("s_cbranch_scc1 L_prod")
    bi(a)
    a("s_branch L_noprod0")
    a.label("L_prod")
    a("s_setprio 3")
    producer_loads(a, 120, 59)
    if PDIAG: fine(a, 3)
    a("s_waitcnt lgkmcnt(0)")
    srd(a, sSRDW, 6, W_BYTES)
    producer_loads2(a, 120)
    if PDIAG: fine(a, 4)
    a("s_branch L_prod2")
    a.label("L_n0")
    a("s_cmp_lt_u32 s%d, 4" % sWave)
    a("s_cbranch_scc1 L_c")
    a.label("L_h")

    def decode1(a):
        a("s_bfe_u32 s%d, s2, 0x20003" % sQ)
        a("s_lshr_b32 s%d, s%d, 1" % (sUf, sQ))
        a("s_and_b32 s%d, s%d, 1" % (sOdd, sQ))
        a("s_xor_b32 s%d, s%d, s%d" % (sVf, sOdd, sUf))
        a("s_lshl_b32 s56, s%d, 1" % sVf)
        a("s_sub_u32 s56, 1, s56")
        a("s_bitcmp1_b32 s2, 5")
        a("s_cselect_b32 s%d, 0, 128" % sK[0])
        a("s_cselect_b32 s%d, 64, 0" % sK[1])
        a("s_cselect_b32 s%d, 128, 64" % sK[2])

    def decode2(a):
        a("s_bfe_u32 s48, s2, 0x10005")
        a("s_bfe_u32 s49, s2, 0x10006")
        a("s_lshr_b32 s50, s2, 7")
        a("s_and_b32 s51, s2, 1")
        a("s_lshl1_add_u32 s50, s51, s50")
        a("s_bfe_u32 s51, s2, 0x20001")
        a("s_lshl_b32 s59, s%d, 3" % sQ)
        a("s_lshr_b32 s57, 0x0c1b0000, s59")
        a("s_and_b32 s57, s57, 0xff")
        a("s_lshr_b32 s58, 0x000c1b00, s59")
        a("s_and_b32 s58, s58, 0xff")
        a("s_mul_i32 s59, s51, 28")
        a("s_add_u32 s57, s57, s59")
        a("s_mul_i32 s59, s50, 28")
        a("s_add_u32 s58, s58, s59")
        a("s_lshl1_add_u32 s57, s57, s49")
        a("s_lshl1_add_u32 s58, s58, s48")
        a("s_mul_i32 s57, s57, 224")
        a("s_add_u32 s57, s57, s58")
        a("s_mul_i32 s%d, s57, 192" % sOO)
        a("s_mov_b32 s57, 86016")
        a("s_cmp_eq_u32 s%d, 1" % sOdd)
        a("s_cselect_b32 s%d, s57, 384" % sSx)
        a("s_cselect_b32 s%d, 384, s57" % sSy)
        a("s_cselect_b32 s46, s50, s51")
        a("s_cselect_b32 s47, s51, s50")
        a("s_mul_i32 s%d, s%d, s56" % (sSy, sSy))

    def decode3(a):
        a("s_lshl_b32 s57, s%d, 3" % sQ)
        for t, tab in enumerate((0x00804000, 0x40008040, 0x80400080)):
            a("s_lshr_b32 s58, 0x%08x, s57" % tab)
            a("s_and_b32 s%d, s58, 0xff" % sSeg[t])

    global LATE
    a("s_setprio %d" % HPRIO0)
    a("v_lshrrev_b32 v21, 4, v0")
    a("v_bfe_u32 v22, v0, 2, 2")
    a("v_and_b32 v23, 3, v0")
    a("v_bfrev_b32 v24, 2")
    decode1(a)
    decode2(a)
    a("s_mul_i32 s58, s%d, 3" % sVf)
    a("s_cmp_eq_u32 s46, s58")
    a("s_cselect_b32 s58, 2, 0")
    a("s_sub_u32 s%d, s%d, 4" % (sH, sWave))
    a("s_cmp_eq_u32 s%d, 0" % sH)
    a("s_cselect_b32 s58, s58, 0")
    a("v_cmp_gt_u32 vcc, s58, v21")
    a("v_mul_i32_i24 v25, s%d, v21" % sSy)
    a("v_mad_i32_i24 v25, v22, s%d, v25" % sSx)
    a("v_lshl_add_u32 v25, v23, 4, v25")
    a("s_lshl2_add_u32 s57, s%d, -2" % sH)
    a("s_mul_i32 s57, s57, s%d" % sSy)
    a("s_add_u32 s57, s57, s%d" % sOO)
    a("s_lshl1_add_u32 s57, s%d, s57" % sSx)
    a("v_add_u32 v26, s57, v25")
    a("v_cndmask_b32 v%d, v26, v24, vcc" % hMid)
    a("s_lshl_b32 s101, s%d, 2" % sSx)
    a("s_mul_i32 s59, s%d, 3" % sUf)
    a("s_cmp_eq_u32 s47, s59")
    a("s_cselect_b32 s57, 2, 0")
    a("s_cmp_eq_u32 s%d, 0" % sUf)
    a("s_cselect_b32 s58, s57, 0")
    a("s_cselect_b32 s57, 0, s57")
    a("s_sub_u32 s57, 4, s57")
    a("v_cmp_gt_u32 vcc, s58, v22")
    a("v_subrev_u32 v26, s101, v%d" % hMid)
    a("s_mul_i32 s%d, s%d, 5120" % (sRaw, sH))
    a("v_cndmask_b32 v%d, v26, v24, vcc" % hLo)
    a("v_cmp_le_u32 vcc, s57, v22")
    fine(a, 1)
    a("s_waitcnt lgkmcnt(0)")
    fine(a, 2)
    amp(a, "karg")
    srd(a, sSRDX, 4, X_BYTES)
    a("v_cndmask_b32 v%d, v%d, v24, vcc" % (hHi, hMid))
    for i in range(5):
        a("s_add_u32 m0, s%d, %d" % (sRaw, RAW0 + i * 1024))
        if i == 0:
            a("s_mov_b32 s58, s%d" % sK[0])
        elif i >= 2:
            a("s_add_u32 s58, s58, s101")
        else:
            a("s_nop 0")
        a("buffer_load_dwordx4 v%d, %s, s58 offen%s lds" % ((hLo, hMid, hMid, hMid, hHi)[i], S4(sSRDX), XFLAG))
    amp(a, "x0i")
    a("s_sub_u32 s100, 1, s%d" % sUf)
    a("s_mul_i32 s100, s100, 6")
    a("s_cmp_ge_u32 s%d, 2" % sH)
    a("s_cbranch_scc1 L_hB")

    l = LATE = Asm()
    srd(l, sSRDO, 8, X_BYTES)
    decode3(l)
    l("v_and_b32 v24, 15, v0")
    l("v_and_b32 v25, 7, v0")
    l("v_lshlrev_b32 v26, 2, v21")
    l("v_sub_u32 v%d, v26, v25" % hM0)
    l("v_lshrrev_b32 v26, 1, v25")
    l("v_and_b32 v26, 2, v26")
    l("v_xor_b32 v26, v26, v21")
    l("v_lshlrev_b32 v26, 4, v26")
    l("v_lshl_add_u32 v26, v25, 6, v26")
    l("v_lshrrev_b32 v28, 3, v24")
    l("v_mul_u32_u24 v28, %d, v28" % DPL)
    l("s_lshl_b32 s58, s%d, 11" % sH)
    l("s_add_u32 s58, s58, %d" % DBASE)
    l("v_add3_u32 v%d, v26, v28, s58" % hDW)
    l("v_bfe_u32 v29, v0, 1, 2")
    l("v_and_b32 v30, 1, v0")
    l("v_cmp_eq_u32 vcc, v29, v21")
    l("v_sub_u32 v26, 0, v30")
    l("v_add_u32 v30, s100, v30")
    l("v_cndmask_b32 v%d, 64, v26, vcc" % hM1)
    l("s_lshr_b32 s58, s100, 1")
    l("s_and_b32 s58, s58, 2")
    l("v_xor_b32 v26, s58, v21")
    l("v_lshlrev_b32 v26, 4, v26")
    l("v_lshl_add_u32 v26, v30, 6, v26")
    l("v_lshl_add_u32 v26, v29, 9, v26")
    l("s_mov_b32 s58, %d" % (DBASE + 16 * 512))
    l("v_add3_u32 v%d, v26, v28, s58" % hEW)
    l("v_lshlrev_b32 v24, 4, v24")
    l("s_add_u32 s58, s%d, %d" % (sRaw, RAW0))
    for h in range(2):
        l("v_lshl_add_u32 v26, v21, 1, %d" % h)
        l("v_min_u32 v26, 4, v26")
        l("v_lshl_add_u32 v26, v26, 10, v24")
        l("v_add_u32 v%d, s58, v26" % hTR[h])
    l("v_lshl_add_u32 v26, v21, 8, v24")
    l("v_add_u32 v%d, %d, v26" % (hTE, RAWE))
    l("v_lshrrev_b32 v24, 2, v0")
    l("v_bfe_u32 v26, v0, 3, 2")
    l("v_xor_b32 v26, v26, v23")
    l("v_lshlrev_b32 v26, 4, v26")
    l("v_lshl_add_u32 v26, v24, 6, v26")
    l("s_mul_i32 s58, s%d, 3072" % sH)
    l("s_add_u32 s58, s58, %d" % STG)
    l("v_add_u32 v%d, s58, v26" % hRd)
    l("v_and_b32 v26, 7, v24")
    l("v_lshrrev_b32 v24, 3, v24")
    l("v_lshl_add_u32 v26, v26, 1, v24")
    l("v_mul_i32_i24 v26, s%d, v26" % sSx)
    l("v_lshl_add_u32 v26, v23, 4, v26")
    l("s_mul_i32 s58, s%d, 3" % sH)
    l("s_mul_i32 s58, s58, s%d" % sSy)
    l("s_add_u32 s58, s58, s%d" % sOO)
    l("v_add_u32 v%d, s58, v26" % hOut)
    for i in range(2):
        l("v_add_u32 v%d, s%d, v%d" % (hOut + i + 1, sSy, hOut + i))

    slow = Asm()
    far = Asm()
    a("s_lshl1_add_u32 s57, s100, -2")
    a("s_mul_i32 s57, s57, s%d" % sSx)
    a("s_mul_i32 s58, s%d, 14" % sSy)
    a("s_add_u32 s57, s57, s58")
    a("s_add_u32 s57, s57, s%d" % sOO)
    a("v_add_u32 v%d, s57, v25" % hE)
    hA = Asm()
    gen_help(hA, "A", slow)
    cut = hA.l.index("@SPLIT:")
    a.l += hA.l[:cut]
    far.l += hA.l[cut + 1:]
    a.label("L_hB")
    hB = Asm()
    gen_help(hB, "B", slow)
    cut = hB.l.index("@SPLIT:")
    a.l += hB.l[:cut]
    far.l += hB.l[cut + 1:]

    a.label("L_c")
    a("s_cmp_lg_u32 s%d, 0" % sWave)
    a("s_cbranch_scc1 L_cw")
    a("s_getpc_b64 s[56:57]")
    a.label("L_pc")
    a("s_add_u32 s56, s56, %s_kernel + 2048 - L_pc" % NAME)
    a("s_addc_u32 s57, s57, 0")
    a("s_lshr_b32 s58, s2, 3")
    a("s_mul_i32 s59, s58, 43")
    a("s_lshr_b32 s59, s59, 8")
    a("s_mul_i32 s59, s59, 6")
    a("s_sub_u32 s58, s58, s59")
    a("s_lshl_b32 s58, s58, 13")
    a("v_lshlrev_b32 v2, 7, v0")
    a("v_add_u32 v2, s58, v2")
    a("global_load_dword v%d, v2, s[56:57]" % vPref)
    bi(a)
    a("s_branch L_noprod0")
    a.label("L_cw")
    a("s_lshr_b32 s%d, s%d, 1" % (sWv, sWave))
    decode1(a)
    wsetup(a, None)
    a("s_setprio %d" % WPRIO0)
    a("s_waitcnt lgkmcnt(0)")
    srd(a, sSRDW, 6, W_BYTES)
    for k in range(NCW):
        for g in wdma(k):
            for o in g:
                a(o[0] if isinstance(o, tuple) else o)
        if k == 0:
            fine(a, 0)
            a("s_setprio %d" % WPRIO1)
            bi(a)
    fine(a, 1)
    a("s_branch L_noprod0")
    a.label("L_prod2")
    srdT(a)
    producer_rest(a, 120, "%d" % PSCR)
    amp(a, "pst")
    fine(a, 1)
    bi(a)
    a("v_bfrev_b32 v%d, 2" % vAt)
    if FLAGB:
        a("v_writelane_b32 v%d, s59, 0" % vAt)
    else:
        a("s_and_b32 s58, s59, 1")
        a("s_lshl_b32 s58, s58, 6")
        a("v_writelane_b32 v%d, s58, 0" % vAt)
    a("s_branch L_noprod")
    a.l += far.l
    w3 = slow

    a.label("L_noprod0")
    a("v_bfrev_b32 v%d, 2" % vAt)
    a.label("L_noprod")
    a("s_waitcnt lgkmcnt(0)")
    srd(a, sSRDO, 8, X_BYTES)
    srd(a, sSRDG, 10, 256)
    a("v_mov_b32 v%d, 1" % vOne)
    decode1(a)
    decode2(a)
    decode3(a)
    a("s_and_b32 s50, s%d, 1" % sWave)
    a("s_lshr_b32 s51, s%d, 1" % sWave)
    T = 108
    vn, vg, vq, vc, t0, t1, t2 = range(T, T + 7)
    a("v_and_b32 v%d, 15, v0" % vn)
    a("v_lshrrev_b32 v%d, 4, v0" % vg)
    a("v_lshrrev_b32 v%d, 2, v%d" % (vq, vn))
    a("v_and_b32 v%d, 3, v0" % vc)
    a("v_lshl_add_u32 v%d, v%d, 3, v%d" % (t0, vg, vq))
    a("v_mul_u32_u24 v%d, 192, v%d" % (t0, t0))
    a("v_lshl_add_u32 v%d, v%d, 3, v%d" % (t0, vc, t0))
    a("v_and_b32 v%d, 1, v%d" % (t1, vg))
    a("v_xor_b32 v%d, s51, v%d" % (t1, t1))
    a("v_lshl_add_u32 v%d, v%d, 5, v%d" % (t0, t1, t0))
    a("v_lshlrev_b32 v%d, 4, v0" % t1)
    a("s_lshl_b32 s58, s51, 10")
    a("v_add_u32 v%d, s58, v%d" % (t1, t1))
    for t in range(3):
        a("v_add_u32 v%d, s%d, v%d" % (vWR[0][t], sSeg[t], t0))
        a("v_add_u32 v%d, %d, v%d" % (vWR[1][t], 2 * WST, vWR[0][t]))
        a("s_lshl_b32 s58, s%d, 5" % sSeg[t])
        a("v_add_u32 v%d, s58, v%d" % (vWT[0][t], t1))
        a("v_add_u32 v%d, %d, v%d" % (vWT[1][t], 2 * WST, vWT[0][t]))
    a("v_lshrrev_b32 v%d, 1, v%d" % (t0, vn))
    a("v_and_b32 v%d, 2, v%d" % (t0, t0))
    a("v_xor_b32 v%d, v%d, v%d" % (t0, t0, vg))
    a("v_lshlrev_b32 v%d, 4, v%d" % (t0, t0))
    a("v_and_b32 v%d, 7, v%d" % (t1, vn))
    a("v_lshl_add_u32 v%d, v%d, 6, v%d" % (t0, t1, t0))
    a("v_lshrrev_b32 v%d, 3, v%d" % (t2, vn))
    a("v_mul_u32_u24 v%d, 3072, v%d" % (t2, t2))
    a("s_mul_i32 s58, s50, 1536")
    a("s_add_u32 s58, s58, %d" % DBASE)
    a("v_add3_u32 v%d, v%d, v%d, s58" % (vX, t0, t2))
    a("v_lshrrev_b32 v%d, 1, v%d" % (t0, vg))
    a("s_lshl_b32 s58, s51, 1")
    a("v_add_u32 v%d, s58, v%d" % (t0, t0))
    a("v_bfe_u32 v%d, v%d, 1, 2" % (T + 7, vn))
    a("v_xor_b32 v%d, v%d, v%d" % (t0, t0, T + 7))
    a("v_lshlrev_b32 v%d, 4, v%d" % (t0, t0))
    a("v_lshl_add_u32 v%d, v%d, 6, v%d" % (t0, t1, t0))
    a("v_lshl_add_u32 v%d, v%d, 1, v%d" % (t0, t2, t0))
    a("v_and_b32 v%d, 1, v%d" % (t1, vg))
    a("v_lshl_add_u32 v%d, v%d, 3, v%d" % (t0, t1, t0))
    a("s_mul_i32 s58, s50, 3072")
    a("s_add_u32 s58, s58, %d" % STG)
    a("v_add_u32 v%d, s58, v%d" % (vSW, t0))
    a("s_sub_u32 s59, 1, s%d" % sUf)
    a("s_mul_i32 s59, s59, 6")
    a("v_and_b32 v%d, 1, v0" % t0)
    a("v_add_u32 v%d, s59, v%d" % (t0, t0))
    a("v_lshrrev_b32 v%d, 1, v%d" % (t1, t0))
    a("v_and_b32 v%d, 2, v%d" % (t1, t1))
    a("v_xor_b32 v%d, v%d, v%d" % (t1, t1, vg))
    a("v_lshlrev_b32 v%d, 4, v%d" % (t1, t1))
    a("v_lshl_add_u32 v%d, v%d, 6, v%d" % (t1, t0, t1))
    a("v_lshl_add_u32 v%d, v%d, 9, v%d" % (t1, T + 7, t1))
    a("v_add_u32 v%d, %d, v%d" % (vXC, DBASE + 12 * 512, t1))
    a("v_add_u32 v%d, 12, v%d" % (t1, T + 7))
    a("v_mul_i32_i24 v%d, s%d, v%d" % (t1, sSy, t1))
    a("v_lshlrev_b32 v%d, 1, v%d" % (t0, t0))
    a("v_mad_i32_i24 v%d, v%d, s%d, v%d" % (t1, t0, sSx, t1))
    a("v_lshl_add_u32 v%d, v%d, 3, v%d" % (t1, vg, t1))
    a("s_lshl_b32 s58, s51, 5")
    a("s_add_u32 s58, s58, s%d" % sOO)
    a("s_cmp_eq_u32 s%d, 3" % sQ)
    a("s_cselect_b32 s59, 0, 8")
    a("v_cmp_gt_u32 vcc, s59, v%d" % vn)
    a("v_add_u32 v%d, s58, v%d" % (t1, t1))
    a("v_bfrev_b32 v%d, 2" % t0)
    a("v_cndmask_b32 v%d, v%d, v%d, vcc" % (vCo, t0, t1))
    a("s_lshl_b32 s58, s51, 11")
    a("s_add_u32 s58, s58, %d" % CSCR)
    a("v_lshlrev_b32 v%d, 4, v0" % t0)
    a("v_add_u32 v%d, s58, v%d" % (vCs, t0))
    a("s_add_u32 s59, s%d, s%d" % (sSeg[0], sSx))
    a("s_setprio 2")

    def atom():
        a("v_mov_b32 v%d, 1" % vRet)
        a("s_waitcnt vmcnt(0)")
        a("buffer_atomic_add v%d, v%d, %s, 0 offen sc0 sc1" % (vRet, vAt, S4(sSRDG)))
        a("v_lshrrev_b32 v%d, 4, v%d" % (vAt, vAt))
        a("v_add_u32 v%d, 128, v%d" % (vAt, vAt))
        a("v_bfrev_b32 v%d, 2" % vPref)
        amp(a, "ack")
        fine(a, 2)

    def go():
        a("s_waitcnt vmcnt(0)")
        a("v_cmp_eq_u32 vcc, %d, v%d" % (NITEM // 2 - 1, vRet))
        a("s_nop 1")
        a("v_cndmask_b32 v%d, v%d, v%d, vcc" % (vAt, vPref, vAt))
        a("buffer_store_dword v%d, v%d, %s, 0 offen sc1" % (vOne, vAt, S4(sSRDG)))
        amp(a, "go")
        fine(a, 0)

    a("s_cmp_eq_u32 s50, 1")
    a("s_cbranch_scc1 L_c1")
    marks = {"@T0": 3, "@T1": 4, "@T3": 5, "@T5": 6, "@T7": 7, "@T11": 8, "@T16": 9, "@E0": 10, "@E1": 11}
    if MARKS:
        marks = {"@T%d" % k: i for i, k in enumerate(MARKS)}
    if PDIAG:
        marks = {"@T1": 10, "@T3": 11}
    for mh in range(2):
        lines, tail = schedule(mh)
        if mh == 1:
            a.label("L_c1")
        if mh == 1:
            a("s_waitcnt vmcnt(%d)" % (15 * (NCW - 1)))
        elif ATOM_AT < 0:
            atom()
        a("s_barrier")
        stamp(a, 1)
        first = True
        for t in lines:
            if t == "@ATOM":
                if mh == 0:
                    atom()
            elif t == "@GO":
                if mh == 0:
                    go()
            elif t.startswith("@"):
                if t in marks:
                    fine(a, marks[t])
            else:
                if t == "s_barrier" and first:
                    first = False
                    if mh == 1:
                        a("s_waitcnt vmcnt(0)")
                a(t)
        stamp(a, 2)
        for t in tail:
            a(t)
        R = POOL0
        if mh == 0:
            a("ds_read_b128 %s, v%d" % (vr(R), vCs))
            a("ds_read_b128 %s, v%d offset:1024" % (vr(R + 4), vCs))
            a("s_waitcnt lgkmcnt(%d)" % (0 if DIAG else 2))
        else:
            a("s_waitcnt lgkmcnt(0)")
        a("s_barrier")
        if mh == 0:
            a("s_waitcnt lgkmcnt(0)")
            for i in range(8):
                a("v_add_f32 v%d, v%d, v%d" % (ACCC + i, ACCC + i, R + i))
            for e in range(2):
                s = ACCC + 4 * e
                a("v_cvt_pk_bf16_f32 v%d, v%d, v%d" % (s, s, s + 1))
                a("v_cvt_pk_bf16_f32 v%d, v%d, v%d" % (s + 1, s + 2, s + 3))
                a("buffer_store_dwordx2 %s, v%d, %s, s%d offen%s" % (vr(s, 2), vCo, S4(sSRDO), 59 if e else sSeg[0], STFLAG))
        amp_spin(a)
        if DIAG:
            a("s_waitcnt vmcnt(0)")
        stamp(a, 3)
        stamp_flush(a)
        a("s_endpgm")
    a.l += w3.l
    a.l.append(".fill (%d" % CODE_END + " - (. - %s_kernel)) / 4, 4, 0xbf800000" % NAME)
    a("s_endpgm")

    a.l.append('.section .rodata,"a"')
    a.l.append(".p2align 6")
    a.l.append(".amdhsa_kernel %s_kernel" % NAME)
    a.l.append("  .amdhsa_next_free_vgpr 256")
    a.l.append("  .amdhsa_next_free_sgpr 102")
    a.l.append("  .amdhsa_accum_offset 256")
    a.l.append("  .amdhsa_group_segment_fixed_size 0")
    a.l.append("  .amdhsa_kernarg_size 40")
    a.l.append("  .amdhsa_user_sgpr_count 2")
    a.l.append("  .amdhsa_user_sgpr_kernarg_segment_ptr 1")
    a.l.append("  .amdhsa_system_sgpr_workgroup_id_x 1")
    a.l.append("  .amdhsa_float_denorm_mode_32 3")
    a.l.append(".end_amdhsa_kernel")
    return a.text()


if __name__ == "__main__":
    if "-diag" in sys.argv:
        DIAG = True
        sys.argv.remove("-diag")
    for kv in [x for x in sys.argv[1:] if "=" in x]:
        k, v = kv.split("=", 1)
        globals()[k] = eval(v)
        sys.argv.remove(kv)
    out = sys.argv[1] if len(sys.argv) > 1 else "cdna_kernels/%s.s" % NAME
    open(out, "w").write(gen())
    print("wrote", out)
```

```python
import sys, struct

NAME = "standalone__dilated_atrous__vision"

DIAG = False
STFLAG = " sc1"
XFLAG = ""
BOFF = 14
WIN = 12
WINR = 6
URG = 6
RATE = 4.0
URG2 = 10
BOFF0 = 20
PK = False
VPRIO = 0
MARGIN = 5
XLOOK = 30
WAITAGE = 9
ATOM_AT = -1
POLL_I = 3
MAXPOLL = 2000
HPRIO = 0
FORCE_FALLBACK = False
PROBE = -99
PDIAG = False
GO_AT = 58
LCNT = 2
AMP = None
AMPX = 3
AMPWG = 100
AMPWAVE = 7
AMPN = 0
ODIAG = 0
NCW = 2
QUOTA = {0: 0, 1: 0}
Q1A = 5
X2_I = 2
X2R_I = 2
X1_I = 1
S2_I = 2
WSLOT = [1, 5, 9, 13, 17, 24, 30, 36, 42, 50]
POLL_END = True
PSLEEP = 2
XORD_E = True
X2Q = 5
MARKS = None
NPRE = 3
FLAGB = False
BI = False
XORD = "D"
WPRIO1 = 1
WPRIO0 = 1
HPRIO0 = 3
CODE_END = 2048 + 3 * 8192 * 2 + 256

P1, P2 = 1.5, 0.625
LAM = (P1 * P2) ** 2
KAP = P1 * P1 + P2 * P2
N1 = 2 * P1 * P1 * (P1 * P1 - P2 * P2)
N2 = 2 * P2 * P2 * (P2 * P2 - P1 * P1)
AL, BE = (1 + P1 / P2) / 2, (1 - P1 / P2) / 2
BT = [[LAM, 0, -KAP, 0, 1, 0], [0, LAM, 0, -KAP, 0, 1],
      [0, -P1 * P2 * P2, -P2 * P2, P1, 1, 0], [0, P1 * P2 * P2, -P2 * P2, -P1, 1, 0],
      [0, -P2 * P1 * P1, -P1 * P1, P2, 1, 0], [0, P2 * P1 * P1, -P1 * P1, -P2, 1, 0]]


def bf16(x):
    u = struct.unpack("<I", struct.pack("<f", x))[0]
    assert u & 0xffff == 0, x
    return u >> 16


def fl(x):
    return "0x%08x" % struct.unpack("<I", struct.pack("<f", x))[0]


WST = 30720
DBASE = 3 * WST
DPL = 10240
NDB = 4
RAW0 = 2 * WST
RAW1 = DBASE + NDB * DPL
RAWE = RAW1 + 20480
PSCR = RAWE + 6144
LDS_TOTAL = PSCR + 4096
STG = DBASE + 2 * DPL
CSCR = STG + 36864

X_BYTES = 224 * 224 * 192
W_BYTES = 25 * 96 * 192
WT_BYTES = 40 * 18432
NG = 18
STEPS = [(0, 0), (0, 1), (0, 2), (1, 0), (1, 1), (1, 2), (2, 0), (2, 1), (2, 2)]


def TS():
    return LAM if STEPS[-1][0] == 0 else 1.0


def PH(k):
    return STEPS[k // 2][0]


def PC(k):
    return STEPS[k // 2][1]


sSRDX, sSRDW, sSRDO, sSRDT, sSRDG, sSRDD = 12, 16, 20, 24, 28, 96 - 4 * 0
sSRDD = 52
sQ, sOO, sSy, sSx, sWave, sOdd, sVf, sUf = range(32, 40)
sK = [40, 41, 42]
sSeg = [43, 44, 45]


class Asm:
    def __init__(self):
        self.l = []

    def __call__(self, s):
        self.l.append("    " + s)

    def label(self, s):
        self.l.append(s + ":")

    def text(self):
        return "\n".join(self.l) + "\n"


def vr(b, n=4):
    return "v[%d:%d]" % (b, b + n - 1)


def srd(a, d, lo, nbytes):
    a("s_mov_b32 s%d, s%d" % (d, lo))
    a("s_and_b32 s%d, s%d, 0xffff" % (d + 1, lo + 1))
    a("s_mov_b32 s%d, 0x%x" % (d + 2, nbytes))
    a("s_mov_b32 s%d, 0x20000" % (d + 3))


def S4(d):
    return "s[%d:%d]" % (d, d + 3)


vSt = 27


def amp(a, name):
    if AMP == name:
        a("s_memrealtime s[92:93]")


def amp_spin(a):
    if not AMP:
        return
    global AMPN
    AMPN += 1
    a("s_cmp_lg_u32 s2, %d" % AMPWG)
    a("s_cbranch_scc1 L_ampx%d" % AMPN)
    a("s_cmp_lg_u32 s%d, %d" % (sWave, AMPWAVE))
    a("s_cbranch_scc1 L_ampx%d" % AMPN)
    a("s_waitcnt vmcnt(0)")
    amp(a, "end")
    a("s_memrealtime s[60:61]")
    a("s_waitcnt lgkmcnt(0)")
    a("s_sub_u32 s92, s92, s90")
    a("s_lshl_b32 s92, s92, %d" % AMPX)
    a("s_min_u32 s92, s92, 30000")
    a.label("L_amp%d" % AMPN)
    a("s_memrealtime s[62:63]")
    a("s_waitcnt lgkmcnt(0)")
    a("s_sub_u32 s62, s62, s60")
    a("s_cmp_lt_u32 s62, s92")
    a("s_cbranch_scc1 L_amp%d" % AMPN)
    a.label("L_ampx%d" % AMPN)


def stamp(a, idx):
    if not DIAG:
        return
    a("s_memrealtime s[60:61]")
    a("s_memtime s[62:63]")
    a("s_waitcnt lgkmcnt(0)")
    for i in range(4):
        a("v_writelane_b32 v%d, s%d, %d" % (vSt, 60 + i, idx * 4 + i))


def fine(a, i):
    if DIAG:
        a("s_memtime s[%d:%d]" % (66 + 2 * i, 67 + 2 * i))


def stamp_flush(a):
    if not DIAG:
        return
    a("s_waitcnt lgkmcnt(0)")
    for i in range(12):
        a("v_writelane_b32 v%d, s%d, %d" % (vSt, 66 + 2 * i, 48 + i))
    for i in range(4):
        a("v_writelane_b32 v%d, s%d, %d" % (vSt, 90 + i, i))
    if ODIAG:
        lab = "L_od%d" % len(a.l)
        a("s_cmp_lg_u32 s%d, %d" % (sWave, ODIAG))
        a("s_cbranch_scc1 %s" % lab)
        srd(a, sSRDD, 10, 256)
        a("v_mov_b32 v1, 0")
        a("v_readlane_b32 s60, v%d, 0" % vSt)
        a("s_not_b32 s61, s60")
        a("v_writelane_b32 v1, s61, 1")
        a("v_writelane_b32 v1, s60, 2")
        for i in (1, 2, 3):
            a("v_readlane_b32 s60, v%d, %d" % (vSt, 4 * i))
            a("s_nop 3")
            a("v_writelane_b32 v1, s60, %d" % (2 + i))
        a("v_readlane_b32 s62, v%d, 2" % vSt)
        for j, ln in enumerate((6, 51, 52, 53, 54, 55, 56, 57, 10, 14)):
            a("v_readlane_b32 s60, v%d, %d" % (vSt, ln))
            a("s_nop 3")
            a("s_sub_u32 s60, s60, s62")
            a("v_writelane_b32 v1, s60, %d" % (6 + j))
        a("v_lshlrev_b32 v2, 2, v0")
        a("v_cmp_gt_u32 vcc, 6, v0")
        a("s_mov_b64 exec, vcc")
        a("buffer_atomic_umax v1, v2, %s, 0 offen sc1" % S4(sSRDD))
        a("s_mov_b64 exec, 0xffc0")
        a("buffer_atomic_add v1, v2, %s, 0 offen sc1" % S4(sSRDD))
        a("s_mov_b64 exec, -1")
        a.label(lab)
    a("s_load_dwordx2 s[10:11], s[0:1], 32")
    a("s_waitcnt lgkmcnt(0)")
    srd(a, sSRDD, 10, 4 << 20)
    a("s_lshl_b32 s60, s2, 3")
    a("s_add_u32 s60, s60, s%d" % sWave)
    a("s_lshl_b32 s60, s60, 8")
    a("s_add_u32 s60, s60, 0x100000")
    a("v_lshlrev_b32 v1, 2, v0")
    a("buffer_store_dword v%d, v1, %s, s60 offen" % (vSt, S4(sSRDD)))


NITEM = 180


def producer_loads(a, R, sItem):
    a("s_mul_i32 s46, s%d, 3641" % sItem)
    a("s_lshr_b32 s46, s46, 16")
    a("s_mul_i32 s47, s46, 18")
    a("s_sub_u32 s47, s%d, s47" % sItem)
    a("s_cmp_ge_u32 s46, 5")
    a("s_cselect_b32 s48, 5, 0")
    a("s_cselect_b32 s50, 1, 5")
    a("s_cselect_b32 s51, 5, 1")
    a("s_sub_u32 s49, s46, s48")
    a("s_mul_i32 s50, s50, s49")
    a("s_mul_i32 s50, s50, 18432")
    a("s_mul_i32 s51, s51, 18432")
    a("s_mul_i32 s56, s47, 86")
    a("s_lshr_b32 s56, s56, 8")
    a("s_mul_i32 s57, s56, 3072 - 192")
    a("s_lshl_b32 s58, s47, 6")
    a("s_add_u32 s50, s50, s57")
    a("s_add_u32 s50, s50, s58")
    a("v_lshrrev_b32 v%d, 2, v0" % (R + 68))
    a("v_mul_u32_u24 v%d, 192, v%d" % (R + 68, R + 68))
    a("v_and_b32 v%d, 3, v0" % (R + 69))
    a("v_lshl_add_u32 v%d, v%d, 4, v%d" % (R + 68, R + 69, R + 68))


def producer_loads2(a, R):
    for b in range(5):
        a("buffer_load_dwordx4 %s, v%d, %s, s50 offen" % (vr(R + 8 * b + 4), R + 68, S4(sSRDW)))
        if b < 4:
            a("s_add_u32 s50, s50, s51")


def producer_rest(a, R, scr):
    RAWR = lambda b: R + 8 * b + 4
    U = R + 40
    EO = [[R + 48, R + 56], None]
    E1 = [R + 0, R + 1, R + 2, R + 3, R + 8, R + 9, R + 10, R + 11]
    O1 = [R + 16, R + 17, R + 18, R + 19, R + 24, R + 25, R + 26, R + 27]
    E = [[R + 48 + i for i in range(8)], E1]
    O = [[R + 56 + i for i in range(8)], O1]
    vl, vt, vw = R + 69, R + 70, R + 71
    a("s_lshl_b32 s48, s48, 2")
    a("s_add_u32 s48, s48, s49")
    a("s_mul_i32 s48, s48, 18432")
    a("s_mul_i32 s58, s56, 3")
    a("s_sub_u32 s58, s47, s58")
    a("s_lshl_b32 s58, s58, 11")
    a("s_add_u32 s48, s48, s58")
    a("s_lshr_b32 s58, s56, 1")
    a("s_mul_i32 s58, s58, 6144")
    a("s_add_u32 s48, s48, s58")
    a("s_and_b32 s58, s56, 1")
    a("s_lshl_b32 s58, s58, 9")
    a("s_add_u32 s48, s48, s58")
    cf = [[2 * LAM / N1 * P1 ** i for i in range(5)], [TS() / N2 * P2 ** i for i in range(5)]]
    a("s_mov_b32 s47, 0xffff0000")
    a("v_lshlrev_b32 v%d, 4, v0" % vl)
    a("v_add_u32 v%d, %s, v%d" % (vw, scr, vl))
    a("v_bfe_u32 v%d, v0, 2, 2" % vt)
    a("v_bfe_u32 v%d, v0, 4, 1" % U)
    a("v_lshl_add_u32 v%d, v%d, 3, v%d" % (vt, U, vt))
    a("v_lshlrev_b32 v%d, 6, v%d" % (vt, vt))
    a("v_and_b32 v%d, 3, v0" % U)
    a("v_lshl_add_u32 v%d, v%d, 3, v%d" % (vt, U, vt))
    a("v_and_b32 v%d, 32, v0" % U)
    a("v_add_u32 v%d, v%d, v%d" % (vt, vt, U))
    a("v_add_u32 v%d, %s, v%d" % (vt, scr, vt))
    a("v_lshl_add_u32 v%d, v%d, 4, v%d" % (vl, U, vl))
    for b in range(5):
        a("s_mov_b32 s50, %s" % fl(cf[0][b]))
        a("s_mov_b32 s51, %s" % fl(cf[1][b]))
        a("s_waitcnt vmcnt(%d)" % (4 - b))
        if PDIAG and R == 120 and b in (0, 4): fine(a, 5 + b // 4)
        for j in range(4):
            a("v_lshlrev_b32 v%d, 16, v%d" % (U + 2 * j, RAWR(b) + j))
            a("v_and_b32 v%d, s47, v%d" % (U + 2 * j + 1, RAWR(b) + j))
        for pi in range(2):
            d = (O if b & 1 else E)[pi]
            for i in range(8):
                a("%s v%d, s%d, v%d" % ("v_mul_f32" if b < 2 else "v_fmac_f32", d[i], 50 + pi, U + i))
    a("s_mov_b32 s50, %s" % fl(AL / BE))
    for pi in range(2):
        for i in range(8):
            a("v_add_f32 v%d, v%d, v%d" % (U + i, E[pi][i], O[pi][i]))
        for i in range(8):
            a("v_sub_f32 v%d, v%d, v%d" % (O[pi][i], E[pi][i], O[pi][i]))
        for j in range(4):
            a("v_cvt_pk_bf16_f32 v%d, v%d, v%d" % (RAWR(2 * pi) + j, U + 2 * j, U + 2 * j + 1))
        a("ds_write_b128 v%d, %s offset:%d" % (vw, vr(RAWR(2 * pi)), 2 * pi * 1024))
        if pi:
            for i in range(8):
                a("v_mul_f32 v%d, s50, v%d" % (O[pi][i], O[pi][i]))
        for j in range(4):
            a("v_cvt_pk_bf16_f32 v%d, v%d, v%d" % (RAWR(2 * pi + 1) + j, O[pi][2 * j], O[pi][2 * j + 1]))
        a("ds_write_b128 v%d, %s offset:%d" % (vw, vr(RAWR(2 * pi + 1)), (2 * pi + 1) * 1024))
        for k in (2 * pi, 2 * pi + 1):
            for h in range(2):
                a("ds_read_b64_tr_b16 %s, v%d offset:%d" % (vr(R + 48 + 4 * k + 2 * h, 2), vt, k * 1024 + h * 256))
    if PDIAG and R == 120: fine(a, 7)
    for k in range(4):
        a("s_waitcnt lgkmcnt(%d)" % (0 if DIAG else (8, 6, 2, 0)[k]))
        if PDIAG and R == 120 and k == 0: fine(a, 9)
        a("buffer_store_dwordx4 %s, v%d, %s, s48 offen sc1" % (vr(R + 48 + 4 * k), vl, S4(sSRDT)))
        if k < 3:
            a("s_add_u32 s48, s48, %d" % (5 * 18432))


vX, vXC = (1, 25), (2, 26)
vWR = [[3, 4, 5], [6, 7, 8]]
vWT = [[9, 10, 11], [12, 13, 14]]
vSW = 15
vCs = 16
vCo = 17
vAt, vOne = 18, 19
vPref = 20
vRet = 21
cP = [22, 23, 24]
ACC = 28
ACCC = ACC + 72
POOL0 = ACCC + 8
NPOOL = (256 - POOL0) // 4


class Frag:
    def __init__(self, key, reads, valid, release):
        self.key, self.reads, self.valid, self.release = key, reads, valid, release
        self.first = self.last = self.reg = None
        self.issued = 0


def acc(e, t, r):
    return ACC + e * 36 + (t * 3 + r) * 4


def build_stream(mh):
    groups = []
    for k in range(NG):
        e = k & 1
        slot = k % 3
        hi = 1 if slot == 2 else 0
        so = (slot - 2 * hi) * WST
        rel = k if k < NG - 3 else None
        if PH(k) == 0:
            wf = [[Frag(("w", k, a_, t), [("ds_read_b64_tr_b16 %%s, v%d offset:%d" % (vWR[hi][t], so + a_ * 6144 + h * 768), 2 * h, 2) for h in range(2)], k - 1, rel)
                   for t in range(3)] for a_ in range(5)]
        else:
            wf = [[Frag(("w", k, a_, t), [("ds_read_b128 %%s, v%d offset:%d" % (vWT[hi][t], so + a_ * 6144), 0, 4)], k - 1, rel)
                   for t in range(3)] for a_ in range(5)]
        xrel = k if k <= NG - 3 else None
        do = (k % NDB) * DPL
        X = [Frag(("x", k, s), [("ds_read_b128 %%s, v%d offset:%d" % (vX[(mh + s) & 1], do + s * 512), 0, 4)], k - 1, xrel) for s in range(7)]
        lo = [0, 1, 2] if (k // 2 + k) % 2 == 0 else [0, 1]
        cen = lo if mh == 0 else [x for x in range(5) if x not in lo]
        T = []
        for t in range(3):
            L = [(acc(e, t, r), wf[a_][t], X[r + a_]) for r in range(3) for a_ in range(5)]
            if t == 0:
                C = [(ACCC + 4 * e, wf[a_][0], Frag(("c", k, a_), [("ds_read_b128 %%s, v%d offset:%d" % (vXC[a_ & 1], do + a_ * 512), 0, 4)], k - 1, xrel)) for a_ in cen]
                L = L[:10] + C + L[10:]
            T.append(L)
        groups.append(T)
    M, starts = [], []
    for k in range(NG - 2):
        starts.append(len(M))
        for t in range(3):
            M += groups[k][t]
    starts.append(len(M))
    for t in range(3):
        M += groups[NG - 2][t] + groups[NG - 1][t]
    return M, starts


def schedule(mh):
    M, starts = build_stream(mh)
    N = len(M)
    bpos = {k: starts[k] + BOFF for k in range(NG - 2)}
    bpos[0] = starts[0] + BOFF0
    bpos[NG - 2] = starts[NG - 2] + 3
    bpos[-1] = -1
    frags = []
    for i, (ac, w, x) in enumerate(M):
        for f in (w, x):
            if f.first is None:
                f.first = i
                frags.append(f)
            f.last = i
    for f in frags:
        f.dead = f.first - MARGIN
        if f.release is not None:
            f.dead = min(f.dead, bpos[f.release] - MARGIN)
    pend = sorted(frags, key=lambda f: (f.dead, f.first))
    free = list(range(NPOOL))
    freeat = {}
    for f in frags:
        freeat.setdefault(f.last, []).append(f)
    uses = {}
    for i, (ac, w, x) in enumerate(M):
        uses.setdefault(ac, []).append(i)

    tasks = []
    chains = []
    pairs = [(acc(0, t, r), acc(1, t, r), t, r) for t in range(3) for r in range(3)] + [(ACCC, ACCC + 4, 0, 9)]
    kk = AL / 2 * TS() / LAM
    for ks in range(1, 9):
        tr = (STEPS[ks - 1][0], STEPS[ks][0])
        if tr[0] == tr[1]:
            continue
        bd = starts[2 * ks]
        tl = []
        for s0, s1, t, r in pairs:
            lastu = max(u for u in uses[s0] + uses[s1] if u < bd)
            next0 = min(u for u in uses[s0] if u >= bd)
            next1 = min(u for u in uses[s1] if u >= bd)
            I4 = range(4)
            if tr == (0, 1):
                o0 = ["v_fmac_f32 v%d, %s, v%d" % (s0 + i, fl(LAM / P1), s1 + i) for i in I4]
                o0 += ["v_fmamk_f32 v%d, v%d, %s, v%d" % (s1 + i, s1 + i, fl(-2 * LAM / P1), s0 + i) for i in I4]
            elif tr == (1, 2):
                l0 = max(u for u in uses[s0] if u < bd)
                tl.append((l0 + 8, next0 - 3, ["v_mul_f32 v%d, %s, v%d" % (s0 + i, fl(kk), s0 + i) for i in I4]))
                o0 = ["v_fmac_f32 v%d, %s, v%d" % (s0 + i, fl(kk * BE / AL), s1 + i) for i in I4]
                o0 += ["v_fmamk_f32 v%d, v%d, %s, v%d" % (s1 + i, s1 + i, fl(kk * (AL / BE - BE / AL)), s0 + i) for i in I4]
            else:
                assert tr == (2, 0)
                o0 = ["v_fmac_f32 v%d, %s, v%d" % (s0 + i, fl(BE / AL), s1 + i) for i in I4]
                o0 += ["v_fmamk_f32 v%d, v%d, %s, v%d" % (s1 + i, s1 + i, fl(-2 * BE / AL), s0 + i) for i in I4]
                tl.append((lastu + 8, next1 - 3, ["v_mul_f32 v%d, %s, v%d" % (s1 + i, fl(P2 / LAM), s1 + i) for i in I4]))
            tl.append((lastu + 8, next0 - 3, o0))
        chains += [[e_, l_, list(ops)] for e_, l_, ops in tl]
    chains.sort(key=lambda z: (z[1], z[0]))
    tl = []
    for s0, s1, t, r in pairs:
      for e, s in ((0, s0), (1, s1)):
        if STEPS[-1][0] == 0:
            lastu = max(uses[s])
            ops = [("v_mul_f32 v%d, %s, v%d" % (s + i, fl(1 / LAM), s + i), None) for i in range(4)] if e == 0 else []
        else:
            lastu = max(uses[s0] + uses[s1])
            if e == 0:
                ops = [("v_fmac_f32 v%d, %s, v%d" % (s0 + i, fl(BE / AL), s1 + i), None) for i in range(4)]
                ops += [("v_mul_f32 v%d, %s, v%d" % (s1 + i, fl(-2 * P2 * BE / AL), s1 + i), None) for i in range(4)]
                ops += [("v_fmac_f32 v%d, %s, v%d" % (s1 + i, fl(P2), s0 + i), None) for i in range(4)]
            else:
                ops = []
        if r == 9:
            if mh == 1:
                ops += [("ds_write_b128 v%d, %s offset:%d" % (vCs, vr(s), e * 1024), ("E", 0))]
        else:
            ops += [("v_cvt_pk_bf16_f32 v%d, v%d, v%d" % (s, s, s + 1), None), ("v_cvt_pk_bf16_f32 v%d, v%d, v%d" % (s + 1, s + 2, s + 3), None),
                    ("ds_write_b64 v%d, %s offset:%d" % (vSW, vr(s, 2), t * 12288 + r * 1024 + e * 512), ("E", t))]
        tl.append((lastu + 8, ops, t))
    tl.sort(key=lambda z: z[0])
    for idx, (e_, ops, t) in enumerate(tl):
        tasks += [(e_, None, o, k) for o, k in ops]
        if t < 2 and all(z[2] != t for z in tl[idx + 1:]):
            tasks.append((e_, None, "@E", ("BAR", t)))

    gap2bar = {v: k for k, v in bpos.items() if k >= 0}
    out, q = [], []
    stats = dict(wait=0, minslack=10 ** 9)

    def wait_for(pred, now):
        last = -1
        for j, e in enumerate(q):
            if pred(e):
                last = j
        if last < 0:
            return
        if now > 12:
            stats["minslack"] = min(stats["minslack"], now - q[last][0])
        for j, e in enumerate(q):
            if e[0] <= now - WAITAGE:
                last = max(last, j)
        n = min(len(q) - 1 - last, 15)
        out.append("s_waitcnt lgkmcnt(%d)" % n)
        stats["wait"] += 1
        del q[:len(q) - n]

    tok = [0.0]

    def try_issue(gap, urgent):
        for f in pend:
            if bpos[f.valid] > gap:
                continue
            if f.key[0] in "xc" and f.first - gap > XLOOK:
                continue
            if urgent is not None and f.dead - gap > urgent:
                return False
            if f.reg is None:
                if not free:
                    return False
                f.reg = POOL0 + 4 * free.pop(0)
            fmt, ro, n = f.reads[f.issued]
            tok[0] -= n
            out.append(fmt % vr(f.reg + ro, n))
            q.append((gap, f, f.release))
            f.issued += 1
            if f.issued == len(f.reads):
                pend.remove(f)
            return True
        return False

    ebar = [None]

    def chain_urgent(gap):
        need = 0
        for c in chains:
            need += len(c[2])
            if c[0] <= gap and need > 2 * (c[1] - gap) - 2:
                return True
            if c[1] - gap > 40:
                break
        return False

    def try_task(gap):
        for c in chains:
            if c[0] <= gap:
                assert gap <= c[1], ("chain late", gap, c)
                out.append(c[2].pop(0))
                if not c[2]:
                    chains.remove(c)
                return True
        if not tasks or tasks[0][0] > gap:
            return False
        e_, l_, o, k = tasks[0]
        if k and k[0] == "BAR":
            tasks.pop(0)
            ebar[0] = (gap, k[1])
            return try_task(gap)
        assert l_ is None or gap <= l_, ("task late", gap, tasks[0])
        tasks.pop(0)
        out.append(o)
        if k:
            q.append((gap, None, k))
        return True

    while pend and pend[0].dead < 0:
        assert try_issue(-1, None)
    seen = set()
    for i, (ac, w, x) in enumerate(M):
        for f in (w, x):
            assert f.issued == len(f.reads), (i, f.key)
        wait_for(lambda e: e[1] is w or e[1] is x, i)
        c = vr(ac) if ac in seen else "0"
        seen.add(ac)
        out.append("v_mfma_f32_16x16x32_bf16 %s, %s, %s, %s" % (vr(ac), vr(w.reg), vr(x.reg), c))
        for f in freeat.get(i, []):
            free.append((f.reg - POOL0) // 4)
        if i == ATOM_AT:
            out.append("@ATOM")
            continue
        if i in WSLOT and NCW > 2:
            out.append("@W%d" % WSLOT.index(i))
            if mh == 1:
                continue
        if i == GO_AT:
            out.append("@GO")
            continue
        if i in gap2bar:
            k = gap2bar[i]
            assert not any(f.release == k for f in pend), k
            wait_for(lambda e: e[2] == k, i)
            out.append("s_barrier")
            out.append("@T%d" % k)
            continue
        if ebar[0] and i - ebar[0][0] >= 6:
            t = ebar[0][1]
            wait_for(lambda e: e[2] == ("E", t), i)
            out.append("s_barrier")
            out.append("@E%d" % t)
            ebar[0] = None
            continue
        n = 0
        busy = bool(tasks) and tasks[0][0] <= i
        inwin = any(0 < i - b <= (WIN if PH(k + 1) else WINR) and S2_I <= k < NG - 3 for b, k in gap2bar.items())
        tok[0] = min(tok[0] + RATE, 4.0) if i > 0 else 4.0
        if not inwin and try_issue(i, None if tok[0] > 0 else URG2):
            n += 1
            if try_issue(i, URG):
                n += 1
        while n < (4 if chain_urgent(i) else 2) and try_task(i):
            n += 1
    assert not pend and not chains
    tail = []
    if ebar[0]:
        tail += ["s_waitcnt lgkmcnt(0)", "s_barrier"]
    tail.append("s_nop 7")
    for e_, l_, o, k in tasks:
        if k and k[0] == "BAR":
            tail += ["s_waitcnt lgkmcnt(0)", "s_barrier"]
        else:
            tail.append(o)
    sys.stderr.write("mh=%d mfma=%d lines=%d waits=%d minslack=%d tail=%d\n" % (mh, N, len(out), stats["wait"], stats["minslack"], len(tail)))
    nb = sum(1 for o in out + tail if o == "s_barrier")
    assert nb == (NG - 1) + 2, nb
    return out, tail


hLo, hMid, hHi, hE, hDW, hEW, hRd, hTE, hM0, hM1 = range(1, 11)
hTR = [11, 12]
hDW1 = {"A": 204, "B": 180}
hOut = 13
wP = [16, 17, 18]
wPoll, wPo = 19, 20
hC = 21
hTm = 28
hAcc = 36
hResL = {"A": [52, 56, 60, 64, 188, 192, 196, 200], "B": [52, 56, 60, 64, 164, 168, 172, 176]}
NRES = 8
hXA = 68
hXE = 164
hPr = 184
sH, sRaw = 46, 47
sG0, sGa, sG4, sT0_, sTa_, sWv = 94, 95, 96, 97, 98, 99
LATE = None


class VQ:
    def __init__(self, a):
        self.a, self.q = a, []

    def add(self, tag):
        self.q.append(tag)

    def wait(self, pred):
        last = -1
        for j, t in enumerate(self.q):
            if pred(t):
                last = j
        if last < 0:
            return
        n = len(self.q) - 1 - last
        self.a("s_waitcnt vmcnt(%d)" % min(n, 63))
        del self.q[:last + 1]


def bi(a):
    if BI:
        a("s_barrier")


def srdT(a):
    a("s_and_b32 s%d, s%d, 0xffff" % (sSRDT + 1, sSRDT + 1))
    a("s_mov_b32 s%d, 0x%x" % (sSRDT + 2, WT_BYTES))
    a("s_mov_b32 s%d, 0x20000" % (sSRDT + 3))


def build_T(ph, which):
    ops = []
    ops.append("v_and_b32 v%d, 8, v0" % hC)
    ops.append("v_cmp_ne_u32 vcc, 0, v%d" % hC)
    for m in range(3):
        c = [bf16(BT[2 * ph + e][2 * m]) | bf16(BT[2 * ph + e][2 * m + 1]) << 16 for e in range(2)]
        ops.append("v_mov_b32 v%d, 0x%x" % (hC + m, c[0]))
        ops.append("v_mov_b32 v%d, 0x%x" % (hC + 3 + m, c[1]))
    for m in range(3):
        ops.append("v_cndmask_b32 v%d, v%d, v%d, vcc" % (hC + m, hC + m, hC + 3 + m))
    for w in which:
        src = (hM0, hM1)[w]
        for d in range(-3, 3):
            ops.append("v_cmp_eq_i32 vcc, %d, v%d" % (d, src))
            ops.append("s_nop 1")
            for j in range(4):
                m = d + j
                if 0 <= m <= 2:
                    r = hTm + 4 * w + j
                    first = (m == 0)
                    ops.append("v_cndmask_b32 v%d, %s, v%d, vcc" % (r, "0" if first else "v%d" % r, hC + m))
    ops.append("s_nop 1")
    return ops


def wdma(k, wP=None):
    wP = wP or globals()["wP"]
    p = PC(k)
    G = []
    for t in range(5):
        g = []
        if t == 0:
            g.append("s_mul_i32 s59, s%d, 96" % sK[p])
            if PH(k) == 0:
                g.append("s_add_u32 s59, s59, s%d" % (sG4 if k & 1 else sG0))
            else:
                term = 2 * (PH(k) - 1) + (k & 1)
                g.append("s_add_u32 s59, s59, s%d" % sT0_)
                if term:
                    g.append("s_add_u32 s59, s59, %d" % (term * 5 * 18432))
        g.append("s_add_u32 m0, s%d, %d" % (sWv, (k % 3) * WST + t * 6144))
        g.append("s_add_u32 s59, s59, s%d" % (sGa if PH(k) == 0 else sTa_) if t else "s_nop 0")
        for j in range(3):
            if PH(k) == 0:
                g.append(("buffer_load_dwordx4 v%d, %s, s59 offen offset:%d lds" % (wP[j], S4(sSRDW), j * 1024), ("w", k)))
            else:
                g.append(("buffer_load_dwordx4 v%d, %s, s59 offen offset:%d sc1 lds" % (wP[0], S4(sSRDT), j * 1024), ("w", k)))
        G.append(g)
    return G


def wsetup(a, wP=None):
    wP = wP or globals()["wP"]
    a("s_mul_i32 s%d, s%d, 3072" % (sWv, sWv))
    a("s_mov_b32 s57, 92160")
    a("s_cmp_eq_u32 s%d, 1" % sOdd)
    a("s_cselect_b32 s%d, 18432, s57" % sGa)
    a("s_cselect_b32 s%d, s57, 18432" % sG4)
    a("s_mul_i32 s%d, s%d, s%d" % (sG0, sGa, sVf))
    a("s_lshl2_add_u32 s%d, s%d, s%d" % (sG0, sG0, sWv))
    a("s_mul_i32 s%d, s%d, s56" % (sGa, sGa))
    a("s_lshl2_add_u32 s%d, s%d, s%d" % (sG4, sG4, sG0))
    a("s_mul_i32 s%d, s%d, 5" % (sT0_, sOdd))
    a("s_add_u32 s%d, s%d, s%d" % (sT0_, sT0_, sVf))
    a("s_mul_i32 s%d, s%d, %d" % (sT0_, sT0_, 4 * 18432))
    a("s_add_u32 s%d, s%d, s%d" % (sT0_, sT0_, sWv))
    a("s_mul_i32 s%d, s56, 18432" % sTa_)
    a("v_lshlrev_b32 v%d, 4, v0" % wP[0])
    a("v_and_b32 v%d, 32, v0" % wP[1])
    a("v_xor_b32 v%d, v%d, v%d" % (wP[1], wP[1], wP[0]))
    a("v_xor_b32 v%d, 32, v%d" % (wP[2], wP[0]))

def gen_help(a, role, a3):
    vq = VQ(a)
    XA = lambda p, row, m: hXA + ((p * 4 + row) * 2 + m) * 4
    XE = lambda p, m: hXE + (p * 2 + m) * 4
    rr = [0]
    lab = [0]

    def xload(p, count_only=False):
        for i in range(5):
            if not count_only:
                a("s_add_u32 m0, s%d, %d" % (sRaw, (RAW0 if p == 0 else RAW1) + i * 1024))
                if i == 0:
                    a("s_mov_b32 s58, s%d" % sK[p])
                elif i >= 2:
                    a("s_add_u32 s58, s58, s101")
                else:
                    a("s_nop 0")
                a("buffer_load_dwordx4 v%d, %s, s58 offen%s lds" % ((hLo, hMid, hMid, hMid, hHi)[i], S4(sSRDX), XFLAG))
            vq.add(("x", p))

    def xread(p):
        vq.wait(lambda t: t == ("x", p))
        for row in range(4):
            for m in range(2):
                for h in range(2):
                    a("ds_read_b64_tr_b16 %s, v%d offset:%d" % (vr(XA(p, row, m) + 2 * h, 2), hTR[h], row * 256 + m * 8))

    def eread(ps):
        if role == "A":
            for p in ps:
                for m in range(2):
                    for h in range(2):
                        a("ds_read_b64_tr_b16 %s, v%d offset:%d" % (vr(XE(p, m) + 2 * h, 2), hTE, p * 2048 + h * 1024 + m * 8))

    def emit(g):
        for o in g:
            if isinstance(o, tuple):
                a(o[0])
                vq.add(o[1])
            else:
                a(o)

    def merge(G, chunks):
        G, chunks = list(G), list(chunks)
        while G or chunks:
            if G:
                emit(G.pop(0))
            if chunks:
                emit(chunks.pop(0))

    def rows_ops(srcs, T, dsts):
        c1, c2, c3 = [], [], []
        regs = []
        for i, (A0, A1) in enumerate(srcs):
            for m, A in enumerate((A0, A1)):
                c1.append("v_mfma_f32_16x16x32_bf16 %s, %s, %s, 0" % (vr(hAcc + (2 * i + m) * 4), vr(A), vr(T)))
        c2.append("s_nop %d" % (7 if len(srcs) == 1 else 5))
        for i in range(len(srcs)):
            rr[0] = (rr[0] + 1) % NRES
            r = hResL[role][rr[0]]
            regs.append(r)
            for m in range(2):
                d = hAcc + (2 * i + m) * 4
                c2.append("v_cvt_pk_bf16_f32 v%d, v%d, v%d" % (r + 2 * m, d, d + 1))
                c2.append("v_cvt_pk_bf16_f32 v%d, v%d, v%d" % (r + 2 * m + 1, d + 2, d + 3))
        for r, (ad, off) in zip(regs, dsts):
            c3.append("ds_write_b128 v%d, %s offset:%d" % (ad, vr(r), off))
        return [c1, c2, c3]

    def rows(s, rws):
        p = STEPS[s][1]
        return rows_ops([(XA(p, r, 0), XA(p, r, 1)) for r in rws], hTm, [(hDW1[role] if r & 1 else hDW, ((2 * s) % NDB) * DPL + r * 512) for r in rws])

    def extra_ops(s):
        p = STEPS[s][1]
        return rows_ops([(XE(p, 0), XE(p, 1))], hTm + 4, [(hEW, ((2 * s) % NDB) * DPL)])

    def extra(s, chunks):
        if role != "A":
            return
        lab[0] += 1
        a("s_cmp_lg_u32 s%d, %d" % (sH, STEPS[s][1] & 1))
        a("s_cbranch_scc1 L_ex%d" % lab[0])
        for c in chunks:
            emit(c)
        a.label("L_ex%d" % lab[0])

    def endint(k):
        if role == "B":
            vq.wait(lambda t: t == ("w", k + 1))
        a("s_waitcnt lgkmcnt(0)")
        a("s_barrier")

    which = (0, 1) if role == "A" else (0,)
    TB = lambda ph: [build_T(ph, which)]
    xload(0, True)
    def eload(p):
        if role != "A":
            return
        for i in range(2):
            a("s_mov_b32 m0, %d" % (RAWE + p * 2048 + i * 1024))
            if i == 0:
                a("s_mov_b32 s58, s%d" % sK[p])
            else:
                a("s_add_u32 s58, s58, s101")
            a("s_cmp_lg_u32 s%d, %d" % (sH, p & 1))
            a("s_cbranch_scc1 L_el%d" % (2 * p + i))
            a("buffer_load_dwordx4 v%d, %s, s58 offen%s lds" % (hE, S4(sSRDX), XFLAG))
            a.label("L_el%d" % (2 * p + i))

    def second():
        bi(a)
        xload(1)
        eload(1)
        eload(2)
        if role == "A":
            vq.add(("x", 1))
            vq.add(("x", 1))

    if XORD == "A":
        second()
    a("s_branch L_late%s" % role)
    a.label("@SPLIT")
    a.label("L_late%s" % role)
    a.l += LATE.l
    a("v_xor_b32 v%d, 32, v%d" % (hDW1[role], hDW))
    merge([], TB(0))
    if role == "B":
        srd(a, sSRDG, 10, 256)
        srdT(a)
        if FLAGB:
            a("v_min_u32 v%d, %d, v0" % (wPo, NITEM // 4 - 1))
            a("v_lshlrev_b32 v%d, 2, v%d" % (wPo, wPo))
        else:
            a("v_lshl_add_u32 v%d, v0, 2, 0x80" % wPo if False else "v_lshlrev_b32 v%d, 2, v0" % wPo)
            a("v_cmp_gt_u32 vcc, 2, v0")
            a("v_add_u32 v%d, 128, v%d" % (wPo, wPo))
            a("v_bfrev_b32 v%d, 2" % wPoll)
            a("v_cndmask_b32 v%d, v%d, v%d, vcc" % (wPo, wPoll, wPo))
        a("s_and_b32 s%d, s%d, 1" % (sWv, sH))
        wsetup(a, None)
        srd(a, sSRDW, 6, W_BYTES)
    if XORD == "B":
        second()
    a("s_setprio 3")
    fine(a, 3)
    amp(a, "late")
    xread(0)
    amp(a, "x0")
    eread([0])
    if XORD == "C":
        second()
    for h in range(2):
        a("v_add_u32 v%d, %d, v%d" % (hTR[h], RAW1 - RAW0, hTR[h]))
    fine(a, 4)
    a("s_waitcnt lgkmcnt(%d)" % (0 if DIAG else 8 + (4 if role == "A" else 0)))
    merge([], rows(0, (0, 1)))
    a("s_waitcnt lgkmcnt(%d)" % (0 if DIAG else 2))
    merge([], rows(0, (2, 3)))
    if XORD == "D":
        second()
    extra(0, extra_ops(0))
    if X1_I == -1:
        xread(1)
        fine(a, 0)
        eread([1, 2])
        a("s_waitcnt lgkmcnt(%d)" % (0 if DIAG else min(15, 8 + (8 if role == "A" else 0))))
        merge([], rows(1, (0, 1)))
        a("s_waitcnt lgkmcnt(%d)" % (0 if DIAG else 2))
        merge([], rows(1, (2, 3)))
        extra(1, extra_ops(1))
    fine(a, 5)
    endint(-1)
    amp(a, "B0")
    if XORD == "E":
        second()
    fine(a, 6)
    pendw = []
    pendx = None
    B = role == "B"
    dq = [(k, g) for k in range(NCW, NG) for g in wdma(k)] if B else []
    KT = min(k for k in range(NG) if PH(k))
    polled = [False]

    def take(n, k):
        G = []
        while dq and len(G) < n and dq[0][0] - 3 < k and (dq[0][0] < KT or polled[0]):
            G.append(dq.pop(0)[1])
        return G

    def check_poll():
        vq.wait(lambda t: t == ("poll",))
        a("v_cmp_eq_u32 vcc, 0x%x, v%d" % (1 + FORCE_FALLBACK, wPoll))
        a("s_cmp_eq_u64 vcc, %s" % 3)
        a("s_cbranch_scc0 L_slow")
        a.label("L_ready")
        amp(a, "ready")
        fine(a, 7)
        polled[0] = True

    curT = 0
    for k in range(0, NG - 1):
        work = []
        quota = QUOTA.get(k, 7)
        if k == PROBE:
            fine(a, 8)
        emit(pendw)
        pendw = []
        if pendx:
            extra(pendx[0], [pendx[1]])
            pendx = None
        if k == X1_I:
            merge(take(Q1A, k), [])
            if k == POLL_I and B:
                a("buffer_load_dword v%d, v%d, %s, 0 offen sc1" % (wPoll, wPo, S4(sSRDG)))
                vq.add(("poll",))
            xread(1)
            amp(a, "x1")
            fine(a, 0)
            eread([1, 2])
            a("s_waitcnt lgkmcnt(%d)" % (0 if DIAG else min(15, 8 + (8 if role == "A" else 0))))
            if k == 1:
                merge([], rows(1, (0, 1)))
                a("s_waitcnt lgkmcnt(%d)" % (0 if DIAG else 2))
                merge([], rows(1, (2, 3)))
                extra(1, extra_ops(1))
            else:
                c0 = rows(1, (0, 1))
                merge([], c0[:2])
                a("s_waitcnt lgkmcnt(0)")
                c1 = rows(1, (2, 3))
                merge([], c1[:2])
                c = extra_ops(1)
                extra(1, c[:2])
                pendw = c0[2] + c1[2]
                pendx = (1, c[2])
            if X2_I == k:
                xload(2)
        elif k == POLL_I and B and not POLL_END:
            a("buffer_load_dword v%d, v%d, %s, 0 offen sc1" % (wPoll, wPo, S4(sSRDG)))
            vq.add(("poll",))
        if k == POLL_I + 1 and B and not POLL_END:
            G = take(quota, k)
            quota -= len(G)
            merge(G, [])
            check_poll()
        if k == X2_I and k != X1_I:
            xload(2)
        if k == X2R_I:
            G = take(X2Q, k)
            quota -= len(G)
            merge(G, [])
            xread(2)
            work.append(["s_waitcnt lgkmcnt(0)"])
        s = (k + 3) // 2
        if k >= S2_I and s <= 8:
            if STEPS[s][0] != curT:
                curT = STEPS[s][0]
                work += TB(curT)
            if k == 2 and S2_I == 2:
                c = rows(s, (0, 1))
                work += c[:2]
                pendw = pendw + c[2]
            c = rows(s, (0, 1) if k % 2 == 1 else (2, 3))
            work += c[:2]
            pendw = pendw + c[2]
        G = take(quota, k)
        merge(G, work)
        if POLL_END and B and k == POLL_I:
            a("buffer_load_dword v%d, v%d, %s, 0 offen sc1" % (wPoll, wPo, S4(sSRDG)))
            vq.add(("poll",))
        if POLL_END and B and k == POLL_I + 1:
            check_poll()
            merge(take(quota - len(G), k), [])
        if k >= 2 and k % 2 == 0 and s <= 8:
            c = extra_ops(s)
            extra(s, c[:2])
            pendx = (s, c[2])
        assert not dq or dq[0][0] > k + 1, ("stage not issued in time", k, dq[0][0])
        if k == PROBE:
            fine(a, 9)
        endint(k)
        amp(a, "T%d" % k)
        if k == PROBE:
            fine(a, 10)
    assert not dq
    if role == "A":
        a("s_branch L_xout")
        return
    a.label("L_xout")
    for t in range(3):
        a("s_barrier")
        for i in range(3):
            a("ds_read_b128 %s, v%d offset:%d" % (vr(hXA + (t * 3 + i) * 4), hRd, t * 12288 + i * 1024))
        for i in range(3):
            a("s_waitcnt lgkmcnt(%d)" % (0 if DIAG else 2 - i))
            a("buffer_store_dwordx4 %s, v%d, %s, s%d offen%s" % (vr(hXA + (t * 3 + i) * 4), hOut + i, S4(sSRDO), sSeg[t], STFLAG))
    amp_spin(a)
    fine(a, 11)
    if DIAG:
        a("s_waitcnt vmcnt(0)")
    stamp(a, 3)
    stamp_flush(a)
    a("s_endpgm")
    a = a3
    a.label("L_slow")
    a("s_mov_b32 s59, 0")
    a.label("L_slow1")
    a("buffer_load_dword v%d, v%d, %s, 0 offen sc1" % (wPoll, wPo, S4(sSRDG)))
    a("s_waitcnt vmcnt(0)")
    a("v_cmp_eq_u32 vcc, 0x%x, v%d" % (1 + FORCE_FALLBACK, wPoll))
    a("s_cmp_eq_u64 vcc, %s" % 3)
    a("s_cbranch_scc1 L_ready")
    a("s_sleep %d" % PSLEEP)
    a("s_add_u32 s59, s59, 1")
    a("s_cmp_lt_u32 s59, %d" % (3 if FORCE_FALLBACK else MAXPOLL))
    a("s_cbranch_scc1 L_slow1")
    a("s_add_u32 s100, s%d, %d" % (sRaw, RAW1))
    a("s_mov_b32 s59, 0")
    a.label("L_slow2")
    producer_loads(a, hPr, 59)
    a("s_waitcnt vmcnt(0)")
    producer_loads2(a, hPr)
    producer_rest(a, hPr, "s100")
    a("s_add_u32 s59, s59, 1")
    a("s_cmp_lt_u32 s59, %d" % NITEM)
    a("s_cbranch_scc1 L_slow2")
    a("s_sub_u32 s%d, s100, %d" % (sRaw, RAW1))
    a("s_waitcnt vmcnt(0)")
    a("s_branch L_ready")


def gen():
    a = Asm()
    a.l.append("; @launch grid=(256,1,1) block=(512,1,1) lds=%d" % LDS_TOTAL)
    a.l.append('.amdgcn_target "amdgcn-amd-amdhsa--gfx950"')
    a.l.append(".text")
    a.l.append(".globl %s_kernel" % NAME)
    a.l.append(".p2align 12")
    a.l.append(".p2align 8")
    a.l.append(".type %s_kernel,@function" % NAME)
    a.label("%s_kernel" % NAME)
    a("s_cmp_lt_u32 s2, 256")
    a("s_cbranch_scc1 L_go")
    a("s_endpgm")
    a.label("L_go")
    a("s_load_dwordx8 s[4:11], s[0:1], 0")
    a("s_load_dwordx2 s[%d:%d], s[0:1], 32" % (sSRDT, sSRDT + 1))
    a("v_lshrrev_b32 v1, 6, v0")
    a("s_nop 0")
    a("v_readfirstlane_b32 s%d, v1" % sWave)
    a("v_and_b32 v0, 63, v0")
    if AMP:
        a("s_memrealtime s[90:91]")
        a("s_memrealtime s[92:93]")
    if DIAG:
        a("v_mov_b32 v%d, 0" % vSt)
        a("s_memrealtime s[90:91]")
        a("s_memtime s[92:93]")
        for i in range(12):
            a("s_mov_b32 s%d, 0" % (66 + 2 * i))
    a("s_cmp_lg_u32 s%d, 2" % sWave)
    a("s_cbranch_scc1 L_n0")
    a("s_and_b32 s59, s2, 7")
    a("s_mul_i32 s59, s59, 23")
    a("s_lshr_b32 s58, s2, 3")
    a("s_add_u32 s59, s59, s58")
    a("s_cmp_ge_u32 s58, 23")
    a("s_cselect_b32 s59, 255, s59")
    a("s_cmp_lt_u32 s59, %d" % NITEM)
    a("s_cbranch_scc1 L_prod")
    bi(a)
    a("s_branch L_noprod0")
    a.label("L_prod")
    a("s_setprio 3")
    producer_loads(a, 120, 59)
    if PDIAG: fine(a, 3)
    a("s_waitcnt lgkmcnt(0)")
    srd(a, sSRDW, 6, W_BYTES)
    producer_loads2(a, 120)
    if PDIAG: fine(a, 4)
    a("s_branch L_prod2")
    a.label("L_n0")
    a("s_cmp_lt_u32 s%d, 4" % sWave)
    a("s_cbranch_scc1 L_c")
    a.label("L_h")

    def decode1(a):
        a("s_bfe_u32 s%d, s2, 0x20003" % sQ)
        a("s_lshr_b32 s%d, s%d, 1" % (sUf, sQ))
        a("s_and_b32 s%d, s%d, 1" % (sOdd, sQ))
        a("s_xor_b32 s%d, s%d, s%d" % (sVf, sOdd, sUf))
        a("s_lshl_b32 s56, s%d, 1" % sVf)
        a("s_sub_u32 s56, 1, s56")
        a("s_bitcmp1_b32 s2, 5")
        a("s_cselect_b32 s%d, 0, 128" % sK[0])
        a("s_cselect_b32 s%d, 64, 0" % sK[1])
        a("s_cselect_b32 s%d, 128, 64" % sK[2])

    def decode2(a):
        a("s_bfe_u32 s48, s2, 0x10005")
        a("s_bfe_u32 s49, s2, 0x10006")
        a("s_lshr_b32 s50, s2, 7")
        a("s_and_b32 s51, s2, 1")
        a("s_lshl1_add_u32 s50, s51, s50")
        a("s_bfe_u32 s51, s2, 0x20001")
        a("s_lshl_b32 s59, s%d, 3" % sQ)
        a("s_lshr_b32 s57, 0x0c1b0000, s59")
        a("s_and_b32 s57, s57, 0xff")
        a("s_lshr_b32 s58, 0x000c1b00, s59")
        a("s_and_b32 s58, s58, 0xff")
        a("s_mul_i32 s59, s51, 28")
        a("s_add_u32 s57, s57, s59")
        a("s_mul_i32 s59, s50, 28")
        a("s_add_u32 s58, s58, s59")
        a("s_lshl1_add_u32 s57, s57, s49")
        a("s_lshl1_add_u32 s58, s58, s48")
        a("s_mul_i32 s57, s57, 224")
        a("s_add_u32 s57, s57, s58")
        a("s_mul_i32 s%d, s57, 192" % sOO)
        a("s_mov_b32 s57, 86016")
        a("s_cmp_eq_u32 s%d, 1" % sOdd)
        a("s_cselect_b32 s%d, s57, 384" % sSx)
        a("s_cselect_b32 s%d, 384, s57" % sSy)
        a("s_cselect_b32 s46, s50, s51")
        a("s_cselect_b32 s47, s51, s50")
        a("s_mul_i32 s%d, s%d, s56" % (sSy, sSy))

    def decode3(a):
        a("s_lshl_b32 s57, s%d, 3" % sQ)
        for t, tab in enumerate((0x00804000, 0x40008040, 0x80400080)):
            a("s_lshr_b32 s58, 0x%08x, s57" % tab)
            a("s_and_b32 s%d, s58, 0xff" % sSeg[t])

    global LATE
    a("s_setprio %d" % HPRIO0)
    a("v_lshrrev_b32 v21, 4, v0")
    a("v_bfe_u32 v22, v0, 2, 2")
    a("v_and_b32 v23, 3, v0")
    a("v_bfrev_b32 v24, 2")
    decode1(a)
    decode2(a)
    a("s_mul_i32 s58, s%d, 3" % sVf)
    a("s_cmp_eq_u32 s46, s58")
    a("s_cselect_b32 s58, 2, 0")
    a("s_sub_u32 s%d, s%d, 4" % (sH, sWave))
    a("s_cmp_eq_u32 s%d, 0" % sH)
    a("s_cselect_b32 s58, s58, 0")
    a("v_cmp_gt_u32 vcc, s58, v21")
    a("v_mul_i32_i24 v25, s%d, v21" % sSy)
    a("v_mad_i32_i24 v25, v22, s%d, v25" % sSx)
    a("v_lshl_add_u32 v25, v23, 4, v25")
    a("s_lshl2_add_u32 s57, s%d, -2" % sH)
    a("s_mul_i32 s57, s57, s%d" % sSy)
    a("s_add_u32 s57, s57, s%d" % sOO)
    a("s_lshl1_add_u32 s57, s%d, s57" % sSx)
    a("v_add_u32 v26, s57, v25")
    a("v_cndmask_b32 v%d, v26, v24, vcc" % hMid)
    a("s_lshl_b32 s101, s%d, 2" % sSx)
    a("s_mul_i32 s59, s%d, 3" % sUf)
    a("s_cmp_eq_u32 s47, s59")
    a("s_cselect_b32 s57, 2, 0")
    a("s_cmp_eq_u32 s%d, 0" % sUf)
    a("s_cselect_b32 s58, s57, 0")
    a("s_cselect_b32 s57, 0, s57")
    a("s_sub_u32 s57, 4, s57")
    a("v_cmp_gt_u32 vcc, s58, v22")
    a("v_subrev_u32 v26, s101, v%d" % hMid)
    a("s_mul_i32 s%d, s%d, 5120" % (sRaw, sH))
    a("v_cndmask_b32 v%d, v26, v24, vcc" % hLo)
    a("v_cmp_le_u32 vcc, s57, v22")
    a("s_sub_u32 s100, 1, s%d" % sUf)
    a("s_mul_i32 s100, s100, 6")
    a("v_cndmask_b32 v%d, v%d, v24, vcc" % (hHi, hMid))
    a("s_lshl1_add_u32 s57, s100, -2")
    a("s_mul_i32 s57, s57, s%d" % sSx)
    a("s_mul_i32 s58, s%d, 14" % sSy)
    a("s_add_u32 s57, s57, s58")
    a("s_add_u32 s57, s57, s%d" % sOO)
    a("v_add_u32 v%d, s57, v25" % hE)
    fine(a, 1)
    a("s_waitcnt lgkmcnt(0)")
    fine(a, 2)
    amp(a, "karg")
    srd(a, sSRDX, 4, X_BYTES)
    a("s_cmp_lg_u32 s%d, 0" % sH)
    a("s_cbranch_scc1 L_ne0")
    for i in range(2):
        a("s_mov_b32 m0, %d" % (RAWE + i * 1024))
        a("s_add_u32 s58, s%d, s101" % sK[0] if i else "s_mov_b32 s58, s%d" % sK[0])
        a("buffer_load_dwordx4 v%d, %s, s58 offen%s lds" % (hE, S4(sSRDX), XFLAG))
    a.label("L_ne0")
    for i in range(5):
        a("s_add_u32 m0, s%d, %d" % (sRaw, RAW0 + i * 1024))
        if i == 0:
            a("s_mov_b32 s58, s%d" % sK[0])
        elif i >= 2:
            a("s_add_u32 s58, s58, s101")
        else:
            a("s_nop 0")
        a("buffer_load_dwordx4 v%d, %s, s58 offen%s lds" % ((hLo, hMid, hMid, hMid, hHi)[i], S4(sSRDX), XFLAG))
    amp(a, "x0i")
    a("s_cmp_ge_u32 s%d, 2" % sH)
    a("s_cbranch_scc1 L_hB")

    l = LATE = Asm()
    srd(l, sSRDO, 8, X_BYTES)
    decode3(l)
    l("v_and_b32 v24, 15, v0")
    l("v_and_b32 v25, 7, v0")
    l("v_lshlrev_b32 v26, 2, v21")
    l("v_sub_u32 v%d, v26, v25" % hM0)
    l("v_lshrrev_b32 v26, 1, v25")
    l("v_xor_b32 v26, v26, v21")
    l("v_lshlrev_b32 v26, 4, v26")
    l("v_lshl_add_u32 v26, v25, 6, v26")
    l("v_lshrrev_b32 v28, 3, v24")
    l("v_mul_u32_u24 v28, %d, v28" % DPL)
    l("s_lshl_b32 s58, s%d, 11" % sH)
    l("s_add_u32 s58, s58, %d" % DBASE)
    l("v_add3_u32 v%d, v26, v28, s58" % hDW)
    l("v_bfe_u32 v29, v0, 1, 2")
    l("v_and_b32 v30, 1, v0")
    l("v_cmp_eq_u32 vcc, v29, v21")
    l("v_sub_u32 v26, 0, v30")
    l("v_add_u32 v30, s100, v30")
    l("v_cndmask_b32 v%d, 64, v26, vcc" % hM1)
    l("s_lshr_b32 s58, s100, 1")
    l("v_and_b32 v26, 2, v0")
    l("v_xor_b32 v26, v26, v21")
    l("v_xor_b32 v26, s58, v26")
    l("v_lshlrev_b32 v26, 4, v26")
    l("v_lshl_add_u32 v26, v30, 6, v26")
    l("v_lshl_add_u32 v26, v29, 9, v26")
    l("s_mov_b32 s58, %d" % (DBASE + 16 * 512))
    l("v_add3_u32 v%d, v26, v28, s58" % hEW)
    l("v_lshlrev_b32 v24, 4, v24")
    l("s_add_u32 s58, s%d, %d" % (sRaw, RAW0))
    for h in range(2):
        l("v_lshl_add_u32 v26, v21, 1, %d" % h)
        l("v_min_u32 v26, 4, v26")
        l("v_lshl_add_u32 v26, v26, 10, v24")
        l("v_add_u32 v%d, s58, v26" % hTR[h])
    l("v_lshl_add_u32 v26, v21, 8, v24")
    l("v_add_u32 v%d, %d, v26" % (hTE, RAWE))
    l("v_lshrrev_b32 v24, 2, v0")
    l("v_bfe_u32 v26, v0, 3, 2")
    l("v_xor_b32 v26, v26, v23")
    l("v_lshlrev_b32 v26, 4, v26")
    l("v_lshl_add_u32 v26, v24, 6, v26")
    l("s_mul_i32 s58, s%d, 3072" % sH)
    l("s_add_u32 s58, s58, %d" % STG)
    l("v_add_u32 v%d, s58, v26" % hRd)
    l("v_and_b32 v26, 7, v24")
    l("v_lshrrev_b32 v24, 3, v24")
    l("v_lshl_add_u32 v26, v26, 1, v24")
    l("v_mul_i32_i24 v26, s%d, v26" % sSx)
    l("v_lshl_add_u32 v26, v23, 4, v26")
    l("s_mul_i32 s58, s%d, 3" % sH)
    l("s_mul_i32 s58, s58, s%d" % sSy)
    l("s_add_u32 s58, s58, s%d" % sOO)
    l("v_add_u32 v%d, s58, v26" % hOut)
    for i in range(2):
        l("v_add_u32 v%d, s%d, v%d" % (hOut + i + 1, sSy, hOut + i))

    slow = Asm()
    far = Asm()
    hA = Asm()
    gen_help(hA, "A", slow)
    cut = hA.l.index("@SPLIT:")
    a.l += hA.l[:cut]
    far.l += hA.l[cut + 1:]
    a.label("L_hB")
    hB = Asm()
    gen_help(hB, "B", slow)
    cut = hB.l.index("@SPLIT:")
    a.l += hB.l[:cut]
    far.l += hB.l[cut + 1:]

    a.label("L_c")
    a("s_cmp_lg_u32 s%d, 0" % sWave)
    a("s_cbranch_scc1 L_cw")
    a("s_getpc_b64 s[56:57]")
    a.label("L_pc")
    a("s_add_u32 s56, s56, %s_kernel + 2048 - L_pc" % NAME)
    a("s_addc_u32 s57, s57, 0")
    a("s_lshr_b32 s58, s2, 3")
    a("s_mul_i32 s59, s58, 43")
    a("s_lshr_b32 s59, s59, 8")
    a("s_mul_i32 s59, s59, 6")
    a("s_sub_u32 s58, s58, s59")
    a("s_lshl_b32 s58, s58, 13")
    a("v_lshlrev_b32 v2, 7, v0")
    a("v_add_u32 v2, s58, v2")
    a("global_load_dword v%d, v2, s[56:57]" % vPref)
    bi(a)
    a("s_branch L_noprod0")
    a.label("L_cw")
    a("s_lshr_b32 s%d, s%d, 1" % (sWv, sWave))
    decode1(a)
    wsetup(a, cP)
    a("s_setprio %d" % WPRIO0)
    a("s_waitcnt lgkmcnt(0)")
    srd(a, sSRDW, 6, W_BYTES)
    for k in range(min(NCW, 2)):
        for g in wdma(k, cP):
            for o in g:
                a(o[0] if isinstance(o, tuple) else o)
        if k == 0:
            fine(a, 0)
            a("s_setprio %d" % WPRIO1)
            bi(a)
    fine(a, 1)
    a("s_branch L_noprod0")
    a.label("L_prod2")
    srdT(a)
    producer_rest(a, 120, "%d" % PSCR)
    amp(a, "pst")
    fine(a, 1)
    bi(a)
    a("v_bfrev_b32 v%d, 2" % vAt)
    if FLAGB:
        a("v_writelane_b32 v%d, s59, 0" % vAt)
    else:
        a("s_and_b32 s58, s59, 1")
        a("s_lshl_b32 s58, s58, 6")
        a("v_writelane_b32 v%d, s58, 0" % vAt)
    a("s_branch L_noprod")
    a.l += far.l
    w3 = slow

    a.label("L_noprod0")
    a("v_bfrev_b32 v%d, 2" % vAt)
    a.label("L_noprod")
    a("s_waitcnt lgkmcnt(0)")
    srd(a, sSRDO, 8, X_BYTES)
    srd(a, sSRDG, 10, 256)
    a("v_mov_b32 v%d, 1" % vOne)
    decode1(a)
    decode2(a)
    decode3(a)
    a("s_and_b32 s50, s%d, 1" % sWave)
    a("s_lshr_b32 s51, s%d, 1" % sWave)
    T = 108
    vn, vg, vq, vc, t0, t1, t2 = range(T, T + 7)
    a("v_and_b32 v%d, 15, v0" % vn)
    a("v_lshrrev_b32 v%d, 4, v0" % vg)
    a("v_lshrrev_b32 v%d, 2, v%d" % (vq, vn))
    a("v_and_b32 v%d, 3, v0" % vc)
    a("v_lshl_add_u32 v%d, v%d, 3, v%d" % (t0, vg, vq))
    a("v_mul_u32_u24 v%d, 192, v%d" % (t0, t0))
    a("v_lshl_add_u32 v%d, v%d, 3, v%d" % (t0, vc, t0))
    a("v_and_b32 v%d, 1, v%d" % (t1, vg))
    a("v_xor_b32 v%d, s51, v%d" % (t1, t1))
    a("v_lshl_add_u32 v%d, v%d, 5, v%d" % (t0, t1, t0))
    a("v_lshlrev_b32 v%d, 4, v0" % t1)
    a("s_lshl_b32 s58, s51, 10")
    a("v_add_u32 v%d, s58, v%d" % (t1, t1))
    for t in range(3):
        a("v_add_u32 v%d, s%d, v%d" % (vWR[0][t], sSeg[t], t0))
        a("v_add_u32 v%d, %d, v%d" % (vWR[1][t], 2 * WST, vWR[0][t]))
        a("s_lshl_b32 s58, s%d, 5" % sSeg[t])
        a("v_add_u32 v%d, s58, v%d" % (vWT[0][t], t1))
        a("v_add_u32 v%d, %d, v%d" % (vWT[1][t], 2 * WST, vWT[0][t]))
    a("v_bfe_u32 v%d, v%d, 1, 2" % (t0, vn))
    a("v_xor_b32 v%d, v%d, v%d" % (t0, t0, vg))
    a("v_lshlrev_b32 v%d, 4, v%d" % (t0, t0))
    a("v_and_b32 v%d, 7, v%d" % (t1, vn))
    a("v_lshl_add_u32 v%d, v%d, 6, v%d" % (t0, t1, t0))
    a("v_lshrrev_b32 v%d, 3, v%d" % (t2, vn))
    a("v_mul_u32_u24 v%d, 3072, v%d" % (t2, t2))
    a("s_mul_i32 s58, s50, 1536")
    a("s_add_u32 s58, s58, %d" % DBASE)
    a("v_add3_u32 v%d, v%d, v%d, s58" % (vX[0], t0, t2))
    a("v_xor_b32 v%d, 32, v%d" % (vX[1], vX[0]))
    a("v_lshrrev_b32 v%d, 1, v%d" % (t0, vg))
    a("s_lshl_b32 s58, s51, 1")
    a("v_add_u32 v%d, s58, v%d" % (t0, t0))
    a("v_bfe_u32 v%d, v%d, 1, 2" % (T + 7, vn))
    a("v_xor_b32 v%d, v%d, v%d" % (t0, t0, T + 7))
    a("v_lshlrev_b32 v%d, 4, v%d" % (t0, t0))
    a("v_lshl_add_u32 v%d, v%d, 6, v%d" % (t0, t1, t0))
    a("v_lshl_add_u32 v%d, v%d, 1, v%d" % (t0, t2, t0))
    a("v_and_b32 v%d, 1, v%d" % (t1, vg))
    a("v_lshl_add_u32 v%d, v%d, 3, v%d" % (t0, t1, t0))
    a("s_mul_i32 s58, s50, 3072")
    a("s_add_u32 s58, s58, %d" % STG)
    a("v_add_u32 v%d, s58, v%d" % (vSW, t0))
    a("s_sub_u32 s59, 1, s%d" % sUf)
    a("s_mul_i32 s59, s59, 6")
    a("v_and_b32 v%d, 1, v0" % t0)
    a("v_add_u32 v%d, s59, v%d" % (t0, t0))
    a("v_lshrrev_b32 v%d, 1, v%d" % (t1, t0))
    a("v_xor_b32 v%d, v%d, v%d" % (t1, t1, vg))
    a("v_and_b32 v%d, 2, v0" % t2)
    a("v_xor_b32 v%d, v%d, v%d" % (t1, t1, t2))
    a("v_lshlrev_b32 v%d, 4, v%d" % (t1, t1))
    a("v_lshl_add_u32 v%d, v%d, 6, v%d" % (t1, t0, t1))
    a("v_lshrrev_b32 v%d, 2, v%d" % (t2, vn))
    a("v_and_b32 v%d, 2, v%d" % (t2, t2))
    a("v_xor_b32 v%d, v%d, v%d" % (t2, t2, T + 7))
    a("v_lshl_add_u32 v%d, v%d, 9, v%d" % (t1, t2, t1))
    a("v_add_u32 v%d, %d, v%d" % (vXC[0], DBASE + 12 * 512, t1))
    a("v_xor_b32 v%d, 32, v%d" % (vXC[1], vXC[0]))
    a("v_add_u32 v%d, 12, v%d" % (t1, T + 7))
    a("v_mul_i32_i24 v%d, s%d, v%d" % (t1, sSy, t1))
    a("v_lshlrev_b32 v%d, 1, v%d" % (t0, t0))
    a("v_mad_i32_i24 v%d, v%d, s%d, v%d" % (t1, t0, sSx, t1))
    a("v_lshl_add_u32 v%d, v%d, 3, v%d" % (t1, vg, t1))
    a("s_lshl_b32 s58, s51, 5")
    a("s_add_u32 s58, s58, s%d" % sOO)
    a("s_cmp_eq_u32 s%d, 3" % sQ)
    a("s_cselect_b32 s59, 0, 8")
    a("v_cmp_gt_u32 vcc, s59, v%d" % vn)
    a("v_add_u32 v%d, s58, v%d" % (t1, t1))
    a("v_bfrev_b32 v%d, 2" % t0)
    a("v_cndmask_b32 v%d, v%d, v%d, vcc" % (vCo, t0, t1))
    a("s_lshl_b32 s58, s51, 11")
    a("s_add_u32 s58, s58, %d" % CSCR)
    a("v_lshlrev_b32 v%d, 4, v0" % t0)
    a("v_add_u32 v%d, s58, v%d" % (vCs, t0))
    a("s_add_u32 s59, s%d, s%d" % (sSeg[0], sSx))
    a("s_setprio 2")

    def atom():
        a("v_mov_b32 v%d, 1" % vRet)
        a("s_waitcnt vmcnt(0)")
        a("buffer_atomic_add v%d, v%d, %s, 0 offen sc0 sc1" % (vRet, vAt, S4(sSRDG)))
        a("v_lshrrev_b32 v%d, 4, v%d" % (vAt, vAt))
        a("v_add_u32 v%d, 128, v%d" % (vAt, vAt))
        a("v_bfrev_b32 v%d, 2" % vPref)
        amp(a, "ack")
        fine(a, 2)

    def go():
        a("s_waitcnt vmcnt(0)")
        a("v_cmp_eq_u32 vcc, %d, v%d" % (NITEM // 2 - 1, vRet))
        a("s_nop 1")
        a("v_cndmask_b32 v%d, v%d, v%d, vcc" % (vAt, vPref, vAt))
        a("buffer_store_dword v%d, v%d, %s, 0 offen sc1" % (vOne, vAt, S4(sSRDG)))
        amp(a, "go")
        fine(a, 0)

    a("s_cmp_eq_u32 s50, 1")
    a("s_cbranch_scc1 L_c1")
    marks = {"@T0": 3, "@T1": 4, "@T3": 5, "@T5": 6, "@T7": 7, "@T11": 8, "@T16": 9, "@E0": 10, "@E1": 11}
    if MARKS:
        marks = {"@T%d" % k: i for i, k in enumerate(MARKS)}
    if PDIAG:
        marks = {"@T1": 10, "@T3": 11}
    for mh in range(2):
        lines, tail = schedule(mh)
        if mh == 1:
            a.label("L_c1")
            srd(a, sSRDW, 6, W_BYTES)
            a("v_lshlrev_b32 v%d, 4, v0" % cP[0])
            a("v_and_b32 v%d, 32, v0" % cP[1])
            a("v_xor_b32 v%d, v%d, v%d" % (cP[1], cP[1], cP[0]))
            a("v_xor_b32 v%d, 32, v%d" % (cP[2], cP[0]))
        if mh == 1:
            a("s_waitcnt vmcnt(%d)" % (15 * (min(NCW, 2) - 1)))
        elif ATOM_AT < 0:
            atom()
        a("s_barrier")
        stamp(a, 1)
        cq = VQ(a)
        cq.q = [("w", 1)] if NCW > 1 else []
        cg = [g for k in (2, 3) for g in wdma(k, cP)]
        nb = 0
        for t in lines:
            if t == "@ATOM":
                if mh == 0:
                    atom()
            elif t == "@GO":
                if mh == 0:
                    go()
            elif t.startswith("@W"):
                if mh == 1:
                    j = int(t[2:])
                    assert j < 5 or nb >= 1
                    for o in cg[j]:
                        if isinstance(o, tuple):
                            a(o[0])
                            cq.add(o[1])
                        else:
                            a(o)
            elif t.startswith("@"):
                if t in marks:
                    fine(a, marks[t])
            else:
                if t == "s_barrier":
                    if mh == 1:
                        cq.wait(lambda z: z == ("w", nb + 1))
                    nb += 1
                a(t)
        stamp(a, 2)
        for t in tail:
            a(t)
        R = POOL0
        if mh == 0:
            a("ds_read_b128 %s, v%d" % (vr(R), vCs))
            a("ds_read_b128 %s, v%d offset:1024" % (vr(R + 4), vCs))
            a("s_waitcnt lgkmcnt(%d)" % (0 if DIAG else 2))
        else:
            a("s_waitcnt lgkmcnt(0)")
        a("s_barrier")
        if mh == 0:
            a("s_waitcnt lgkmcnt(0)")
            for i in range(8):
                a("v_add_f32 v%d, v%d, v%d" % (ACCC + i, ACCC + i, R + i))
            for e in range(2):
                s = ACCC + 4 * e
                a("v_cvt_pk_bf16_f32 v%d, v%d, v%d" % (s, s, s + 1))
                a("v_cvt_pk_bf16_f32 v%d, v%d, v%d" % (s + 1, s + 2, s + 3))
                a("buffer_store_dwordx2 %s, v%d, %s, s%d offen%s" % (vr(s, 2), vCo, S4(sSRDO), 59 if e else sSeg[0], STFLAG))
        amp_spin(a)
        if DIAG:
            a("s_waitcnt vmcnt(0)")
        stamp(a, 3)
        stamp_flush(a)
        a("s_endpgm")
    a.l += w3.l
    a.l.append(".fill (%d" % CODE_END + " - (. - %s_kernel)) / 4, 4, 0xbf800000" % NAME)
    a("s_endpgm")

    a.l.append('.section .rodata,"a"')
    a.l.append(".p2align 6")
    a.l.append(".amdhsa_kernel %s_kernel" % NAME)
    a.l.append("  .amdhsa_next_free_vgpr 256")
    a.l.append("  .amdhsa_next_free_sgpr 102")
    a.l.append("  .amdhsa_accum_offset 256")
    a.l.append("  .amdhsa_group_segment_fixed_size 0")
    a.l.append("  .amdhsa_kernarg_size 40")
    a.l.append("  .amdhsa_user_sgpr_count 2")
    a.l.append("  .amdhsa_user_sgpr_kernarg_segment_ptr 1")
    a.l.append("  .amdhsa_system_sgpr_workgroup_id_x 1")
    a.l.append("  .amdhsa_float_denorm_mode_32 3")
    a.l.append(".end_amdhsa_kernel")
    return a.text()


if __name__ == "__main__":
    if "-diag" in sys.argv:
        DIAG = True
        sys.argv.remove("-diag")
    for kv in [x for x in sys.argv[1:] if "=" in x]:
        k, v = kv.split("=", 1)
        globals()[k] = eval(v)
        sys.argv.remove(kv)
    out = sys.argv[1] if len(sys.argv) > 1 else "cdna_kernels/%s.s" % NAME
    open(out, "w").write(gen())
    print("wrote", out)
```
